```python
import torch

def _softmax(x, axis=-1):
    return torch.softmax(x, dim=axis)

def _gelu(x):
    return torch.nn.functional.gelu(x, approximate='tanh')

def _silu(x):
    return torch.nn.functional.silu(x)

def _sigmoid(x):
    return torch.sigmoid(x)

def _layernorm(x, axis=-1, eps=1e-05):
    m = x.mean(dim=axis, keepdim=True)
    v = x.var(dim=axis, keepdim=True, unbiased=False)
    return (x - m) / torch.sqrt(v + eps)

def _scatter_add(tgt, idx, src, axis=0):
    return tgt.clone().index_add_(axis, idx, src)

def _segment_sum(src, seg, n):
    out = torch.zeros((n,) + src.shape[1:], dtype=src.dtype)
    return out.index_add_(0, seg, src)

def _pad(x, pw):
    flat = tuple((v for pair in reversed(pw) for v in pair))
    return torch.nn.functional.pad(x, flat)
kernel_name = 'interleave_layers__ssm_conv_h3__memory_aug_recurrent_mem_tr__prompt'

def setup_inputs():

    _w = lambda a: (lambda t: t.to(torch.bfloat16) if t.is_floating_point() else t)(torch.as_tensor(a))

    def _A_setup():
        B, S, D = (1, 2048, 576)
        ks = 4
        return {'q': _w((lambda *s: torch.randn(*s, dtype=torch.bfloat16) * 0.05)(B, S, D)), 'k': _w((lambda *s: torch.randn(*s, dtype=torch.bfloat16) * 0.2)(B, S, D)), 'v': _w((lambda *s: torch.randn(*s, dtype=torch.bfloat16) * 0.2)(B, S, D)), 'shift_k': _w((lambda *s: torch.randn(*s, dtype=torch.bfloat16) * 0.2)(D, ks) * 0.5), 'ssm_k': _w((lambda *s: torch.randn(*s, dtype=torch.bfloat16) * 0.4)(D, S) * (1.0 / S ** 0.5)), 'ssm_D': _w((lambda *s: torch.randn(*s, dtype=torch.bfloat16) * 0.2)(D))}
    _A_in = _A_setup()

    def _B_setup():
        B, S, Dm = (1, 2048, 576)
        H, Dh = (32, 128)
        M, seg = (8, 32)
        seg = min(seg, S)
        S = S // seg * seg
        return {'x': _w((lambda *s: torch.randn(*s, dtype=torch.bfloat16) * 0.05)(B, S, Dm)), 'mem0': _w((lambda *s: torch.randn(*s, dtype=torch.bfloat16) * 0.2)(B, M, Dm)), 'Wq': _w((lambda *s: torch.randn(*s, dtype=torch.bfloat16) * 1.6)(Dm, H, Dh) * Dm ** (-0.5)), 'Wk': _w((lambda *s: torch.randn(*s, dtype=torch.bfloat16) * 1.6)(Dm, H, Dh) * Dm ** (-0.5)), 'Wv': _w((lambda *s: torch.randn(*s, dtype=torch.bfloat16) * 0.2)(Dm, H, Dh) * Dm ** (-0.5)), 'Wo': _w((lambda *s: torch.randn(*s, dtype=torch.bfloat16) * 0.2)(H, Dh, Dm) * (H * Dh) ** (-0.5)), 'seg_len': seg}
    _B_in = _B_setup()
    return {'A_q': _A_in['q'], 'A_k': _A_in['k'], 'A_v': _A_in['v'], 'A_shift_k': _A_in['shift_k'], 'A_ssm_k': _A_in['ssm_k'], 'A_ssm_D': _A_in['ssm_D'], 'B_x': _B_in['x'], 'B_mem0': _B_in['mem0'], 'B_Wq': _B_in['Wq'], 'B_Wk': _B_in['Wk'], 'B_Wv': _B_in['Wv'], 'B_Wo': _B_in['Wo'], 'B_seg_len': _B_in['seg_len']}

def reference(A_q, A_k, A_v, A_shift_k, A_ssm_k, A_ssm_D, B_x, B_mem0, B_Wq, B_Wk, B_Wv, B_Wo, B_seg_len):

    def _A_ref(q, k, v, shift_k, ssm_k, ssm_D):
        B, S, D = q.shape
        ks = shift_k.shape[-1]
        k_pad = _pad(k, ((0, 0), (ks - 1, 0), (0, 0)))
        k_shift = torch.zeros_like(k)
        for t in range(ks):
            k_shift = k_shift + k_pad[:, t:t + S, :] * shift_k[:, ks - 1 - t][None, None, :]
        kv = k_shift * v
        L = 2 * S
        kv_pad = _pad(kv, ((0, 0), (0, S), (0, 0)))
        kf_pad = _pad(ssm_k, ((0, 0), (0, S)))
        kv_f = (lambda x, axes=(-2, -1): torch.fft.rfft2(x.float(), dim=axes))(kv_pad[:, None, :, :], axes=(1, 2))
        kf_f = (lambda x, axes=(-2, -1): torch.fft.rfft2(x.float(), dim=axes))(kf_pad[:, None, :], axes=(1, 2))
        kf_f = (lambda x, *d: x.permute(*d))(kf_f, 1, 2, 0)
        y_f = kv_f * kf_f[None, :, :, :]
        y = (lambda x, s, axes=(-2, -1): torch.fft.irfft2(x, s=s, dim=axes).to(torch.bfloat16))(y_f, (1, L), axes=(1, 2))[:, 0, :S, :]
        y = y + kv * ssm_D[None, None, :]
        return q * y

    def _B_ref(x, mem0, Wq, Wk, Wv, Wo, seg_len):
        B, S, Dm = x.shape
        H, Dh = (Wq.shape[1], Wq.shape[2])
        M = mem0.shape[1]
        scale = Dh ** (-0.5)
        n_seg = S // seg_len
        L = M + seg_len
        idx = torch.arange(L)
        mask = (idx[:, None] < M) | (idx[:, None] >= idx[None, :])
        mem = mem0
        outs = []
        for s in range(n_seg):
            xs = x[:, s * seg_len:(s + 1) * seg_len, :].clone()
            h = torch.concatenate([mem, xs], axis=1)
            q = torch.einsum('btd,dhe->bhte', h, Wq)
            k = torch.einsum('btd,dhe->bhte', h, Wk)
            v = torch.einsum('btd,dhe->bhte', h, Wv)
            scores = torch.einsum('bhqe,bhke->bhqk', q, k) * scale
            scores = torch.where(mask[None, None], scores, -1000000000.0)
            p = _softmax(scores, axis=-1)
            o = torch.einsum('bhqk,bhke->bhqe', p, v)
            o = torch.einsum('bhte,hed->btd', o, Wo)
            mem = o[:, :M, :].clone()
            outs.append(o[:, M:, :])
        return torch.concatenate(outs, axis=1)
    x = A_q
    x = x + _A_ref(_layernorm(x, axis=-1), A_k, A_v, A_shift_k, A_ssm_k, A_ssm_D)
    x = x + _B_ref(_layernorm(x, axis=-1), B_mem0, B_Wq, B_Wk, B_Wv, B_Wo, B_seg_len)
    x = x + _A_ref(_layernorm(x, axis=-1), A_k, A_v, A_shift_k, A_ssm_k, A_ssm_D)
    x = x + _B_ref(_layernorm(x, axis=-1), B_mem0, B_Wq, B_Wk, B_Wv, B_Wo, B_seg_len)
    return x
```

```python
import re

TRANS = ('v_exp_f32', 'v_log_f32', 'v_rcp_f32', 'v_rsq_f32', 'v_sqrt_f32', 'v_sin_f32', 'v_cos_f32', 'v_rcp_iflag_f32')
_reg_re = re.compile(r'^(-|\|)?(?:abs\()?([vas])(?:(\d+)|\[(\d+):(\d+)\])\)?\|?$')

def regs_of(tok):
    tok = tok.strip()
    if tok in ('vcc', 'exec'): return {(tok, 0), (tok, 1)}
    if tok in ('vcc_lo', 'exec_lo'): return {(tok[:-3], 0)}
    if tok in ('vcc_hi', 'exec_hi'): return {(tok[:-3], 1)}
    if tok == 'm0': return {('m0', 0)}
    m = _reg_re.match(tok)
    if not m: return set()
    k = m.group(2)
    if m.group(3) is not None: return {(k, int(m.group(3)))}
    return {(k, i) for i in range(int(m.group(4)), int(m.group(5)) + 1)}

class Ins:
    __slots__ = ('text', 'mn', 'ops', 'mods', 'cls', 'wr', 'rd', 'passes', 'srcA', 'srcC', 'dpp', 'label', 'target', 'data')
    def __init__(self, text):
        self.text = text
        t = text.split(';')[0].strip()
        self.label = None; self.target = None
        self.wr = set(); self.rd = set(); self.cls = 'other'; self.passes = 0
        self.srcA = set(); self.srcC = set(); self.dpp = False; self.data = set(); self.mn = ''; self.ops = []; self.mods = ''
        if not t: self.cls = 'none'; return
        if t.endswith(':'): self.cls = 'label'; self.label = t[:-1]; return
        if t.startswith('.'): self.cls = 'none'; return
        p = t.split(None, 1)
        mn = self.mn = p[0]
        rest = p[1] if len(p) > 1 else ''
        ops = []; cur = ''; depth = 0
        for ch in rest:
            if ch in '[(': depth += 1
            if ch in '])': depth -= 1
            if ch == ',' and depth == 0: ops.append(cur.strip()); cur = ''
            else: cur += ch
        if cur.strip(): ops.append(cur.strip())
        if ops:
            last = ops[-1].split(None, 1)
            if len(last) > 1 and not mn.startswith('s_waitcnt'): ops[-1] = last[0]; self.mods = last[1]
        self.ops = ops
        R = [regs_of(o) for o in ops]
        U = lambda l: set().union(*l) if l else set()
        if mn.startswith('v_mfma') or mn.startswith('v_smfmac'):
            self.cls = 'mfma'; self.passes = 8 if '32x32' in mn else 4
            self.wr = R[0]
            if mn.startswith('v_smfmac'):
                self.srcA = R[1] | R[2] | R[3]; self.srcC = R[0]; self.rd = self.srcA | self.srcC
                self.data = R[3]
            else:
                self.srcA = R[1] | R[2]; self.srcC = R[3]; self.rd = self.srcA | self.srcC
        elif mn.startswith('v_'):
            self.cls = 'valu'
            self.dpp = ('_dpp' in mn) or ('row_' in self.mods) or ('quad_perm' in self.mods)
            if mn.startswith('v_permlane') and 'swap' in mn or mn.startswith('v_swap'):
                self.wr = R[0] | R[1]; self.rd = R[0] | R[1]
            elif mn.startswith('v_cmpx'):
                raise ValueError('v_cmpx unsupported in hazard pass')
            elif '_co_' in mn:
                self.wr = R[0] | R[1]; self.rd = U(R[2:])
            else:
                self.wr = R[0]; self.rd = U(R[1:])
                if mn.startswith(('v_fmac', 'v_pk_fmac', 'v_dot2c', 'v_writelane')) or self.dpp or 'sdwa' in mn: self.rd |= R[0]
                if mn.startswith('v_cndmask') and len(ops) == 3: self.rd |= regs_of('vcc')
        elif mn.startswith(('buffer_', 'global_')):
            self.cls = 'vmem'
            lds = re.search(r'\blds\b', self.mods) or '_lds_' in mn
            if mn in ('buffer_inv', 'buffer_wbl2'): pass
            elif lds: self.rd = U(R) | {('m0', 0)}; self.cls = 'vmem'; self.data = {'LDS'}
            elif 'load' in mn: self.wr = R[0]; self.rd = U(R[1:])
            elif 'atomic' in mn:
                self.rd = U(R)
                if 'sc0' in self.mods: self.wr = R[0]
            else:
                self.rd = U(R)
                if mn.endswith(('x3', 'x4')): self.data = R[0] if mn.startswith('buffer_') else R[1]
        elif mn.startswith('ds_'):
            self.cls = 'ds'
            if mn.startswith(('ds_read', 'ds_bpermute', 'ds_permute', 'ds_swizzle')): self.wr = R[0]; self.rd = U(R[1:])
            else: self.rd = U(R)
            if '_d16' in mn and mn.startswith('ds_read'): self.rd |= R[0]
        elif mn.startswith('s_'):
            self.cls = 'salu'
            if mn.startswith(('s_cbranch', 's_branch')): self.cls = 'branch'; self.target = ops[0]
            elif mn == 's_nop': self.cls = 'nop'
            elif mn.startswith(('s_cmp', 's_waitcnt', 's_barrier', 's_sleep', 's_setprio', 's_endpgm', 's_bitcmp')): self.rd = U(R)
            else:
                self.wr = R[0] if R else set(); self.rd = U(R[1:])
                if 'saveexec' in mn: self.wr = self.wr | regs_of('exec')
        else:
            raise ValueError('unknown instruction: ' + text)
    def states(self):
        if self.cls in ('none', 'label'): return 0
        if self.cls == 'nop': return int(self.ops[0], 0) + 1
        return 1

def isv(s): return {r for r in s if r[0] in 'va' and r[0] != 'vcc'}
def iss(s): return {r for r in s if r[0] in ('s', 'vcc')}

def need(p, c):
    n = 0
    if p.cls == 'valu':
        pv = isv(p.wr); ps = iss(p.wr)
        if c.cls == 'mfma' and pv & c.rd: n = max(n, 2)
        if c.cls == 'valu':
            if pv & c.rd:
                if c.dpp or c.mn.startswith('v_permlane'): n = max(n, 2)
                if c.mn.startswith(('v_readlane', 'v_readfirstlane')): n = max(n, 1)
                if p.mn in TRANS or p.mn[:-4] in TRANS: n = max(n, 1)
                if 'sdwa' in p.mn or 'op_sel' in p.mods: n = max(n, 1)
            if ps & c.rd:
                n = max(n, 4 if c.mn.startswith(('v_readlane', 'v_writelane')) else 2)
        if c.cls == 'vmem' and ps & c.rd: n = max(n, 5)
        if c.cls in ('salu',) and ps & c.rd: n = max(n, 1)
    elif p.cls == 'mfma':
        k = p.passes
        if c.cls == 'mfma':
            if p.wr & c.srcA: n = max(n, k + 4)
            if p.wr & c.srcC and not (p.wr == c.srcC and p.passes == c.passes): n = max(n, k + 2)
            if p.wr & c.wr and not (p.wr & c.srcC): n = max(n, k + 2)
        elif c.cls in ('valu', 'vmem', 'ds'):
            if p.wr & (c.rd | c.wr): n = max(n, k + 4)
            if c.cls == 'valu' and (p.srcC | p.data) & c.wr: n = max(n, k - 1)
    elif p.cls == 'vmem':
        if p.data and p.data != {'LDS'} and (p.data & c.wr): n = max(n, 2)
    elif p.cls == 'salu':
        if ('m0', 0) in p.wr and c.cls == 'vmem' and ('m0', 0) in c.rd: n = max(n, 1)
    return n

class Asm:
    def __init__(self): self.L = []; self._u = 0
    def __call__(self, text):
        for line in text.split('\n'):
            if line.strip(): self.L.append(Ins(line.strip()))
    def uniq(self, p='L'):
        self._u += 1; return f'{p}_{self._u}'
    def finalize(self, W=14):
        out = []; nins = 0
        for c in self.L:
            if c.cls not in ('none', 'label'):
                d = 0; req = 0
                for p in reversed(out):
                    if d >= W: break
                    if p.cls == 'branch' and p.mn == 's_branch': break
                    if p.mn == 's_endpgm': break
                    r = need(p, c) - d
                    if r > req: req = r
                    d += p.states()
                if req > 0: out.append(Ins(f's_nop {req-1}')); nins += 1
            out.append(c)
        lab = {x.label: i for i, x in enumerate(out) if x.cls == 'label'}
        probs = []
        for i, b in enumerate(out):
            if b.cls != 'branch': continue
            j = lab[b.target]; da = 0
            for c in out[j:j + 40]:
                if c.cls in ('none', 'label'): continue
                if da >= W: break
                d = da + 1
                for p in reversed(out[max(0, i - 40):i]):
                    if d >= W: break
                    if (p.cls == 'branch' and p.mn == 's_branch') or p.mn == 's_endpgm': break
                    if need(p, c) > d: probs.append((b.text, p.text, c.text, need(p, c), d))
                    d += p.states()
                if c.cls == 'branch' and c.mn == 's_branch': break
                da += c.states()
        if probs:
            for p in probs: print('HAZARD across branch:', p)
            raise SystemExit('fix branch hazards')
        self.nops_added = nins
        return '\n'.join((x.text if x.cls == 'label' else '    ' + x.text) for x in out) + '\n'

def vr(b, n=1, k='v'): return f'{k}{b}' if n == 1 else f'{k}[{b}:{b+n-1}]'
def sr(b, n=1): return vr(b, n, 's')
```

```python
from common import *
from wload import *

L16, IDX, PST, PSX, MST, GA, G3, OW, SM, WL = 1, 0, 2, 3, 4, 5, 6, 7, 8, 9
SEL, RSEL = 10, 14
A, B, C, MB, W0, W1, FLG, TCH = 18, 34, 42, 50, 62, 70, 78, 79
TMP = MB + 8
XB_ = 9216
MP_, O0_, O1_ = XB_ + 1024, XB_ + 3072, XB_ + 5120
WBASE = 16384
LDSCH = [('k', 0), ('k', 1), ('k', 3), ('k', 4), ('k', 6), ('v', 0), ('v', 3), ('v', 6), ('o', 8)]
S_L, S_STEP, S_CB, S_R1, S_R2, S_DD, S_STG = 66, 67, 68, 69, 70, 71, 72
S_PC, S_PO, S_MC, S_MP, S_KV, S_KM, S_FI, S_T0, S_T1, S_T2 = 73, 74, 75, 76, 77, 78, 79, 80, 81, 82
S_HALF, S_M16, S_C = 84, 86, 88

def homes():
    h = {}; n = 0
    for m in 'qkvo':
        for t in range(9):
            if (m, t) in LDSCH: continue
            for p in range(2):
                h[(m, t, p)] = ('a', 8 * n) if n < 32 else ('v', 80 + 8 * (n - 32)); n += 1
    assert n == 54
    return h
H = homes()
def f8(f): return vr(f[1], 8, f[0])

class SB:
    def __init__(self, a, name, cap): self.a = a; self.n = 0; self.name = name; self.cap = cap; self.done = 0
    def op(self, text): self.a(text); self.n += 1; return self.n
    def wait(self, t):
        if t <= self.done: return
        k = self.n - t; assert k <= self.cap, (self.name, k)
        self.a(f's_waitcnt {self.name}({k})'); self.done = t
    def reset(self): self.n = 0; self.done = 0

def ids(a):
    a(f'''s_lshr_b32 s{S_L}, s{S_ROLE}, 2
s_mul_i32 s{S_CB}, s{S_L}, {CPSTR}
s_add_u32 s{S_CB}, s{S_CB}, {CP}
s_lshl_b32 s{S_R1}, s{S_HEAD}, 2
s_add_u32 s{S_R1}, s{S_R1}, s{S_WAVE}
s_lshr_b32 s{S_R2}, s{S_HEAD}, 1
s_add_u32 s{S_R2}, s{S_R2}, 128
s_and_b32 s{S_DD}, s{S_HEAD}, 1
s_or_b32 s{S_DD}, s{S_DD}, s{S_WAVE}
s_mov_b32 s{S_M16}, 0x000f000f
s_mov_b32 s{S_M16+1}, 0x000f000f
v_lshrrev_b32 v20, 4, v0
v_and_b32 v21, 15, v0
v_and_b32 v22, 3, v0
v_and_b32 v{PST}, 12, v0
v_add_u32 v{PST}, v{PST}, v20
v_lshlrev_b32 v{PST}, 11, v{PST}
v_lshl_add_u32 v{PST}, v22, 4, v{PST}
s_lshl_b32 s63, s{S_WAVE}, 16
s_lshl_b32 s64, s{S_HEAD}, 6
s_add_u32 s63, s63, s64
v_add_u32 v{PST}, s63, v{PST}
v_lshlrev_b32 v{PSX}, 11, v20
v_lshl_add_u32 v{PSX}, v21, 2, v{PSX}
s_lshl_b32 s63, s{S_WAVE}, 13
s_add_u32 s63, s63, s64
s_add_u32 s63, s63, {128*2048}
v_add_u32 v{PSX}, s63, v{PSX}
v_lshlrev_b32 v{MST}, 2, v22
v_lshl_add_u32 v{MST}, v20, 4, v{MST}''')

def poison_init(a):
    L = a.uniq('L_np')
    a(f's_and_b32 s63, s{S_ROLE}, 3\ns_cbranch_scc1 {L}')
    ids(a)
    a('v_mov_b32 v24, -1\nv_mov_b32 v25, -1\nv_mov_b32 v26, -1\nv_mov_b32 v27, -1')
    for sl in range(2):
        a(f'''s_add_u32 s63, s{S_CB}, {sl*PSLOT}
s_add_u32 s64, s63, 32768
buffer_store_dwordx4 v[24:27], v{PST}, {WS}, s63 offen sc1
buffer_store_dwordx4 v[24:27], v{PST}, {WS}, s64 offen sc1
buffer_store_dword v24, v{PSX}, {WS}, s63 offen sc1''')
    a(f'''s_lshl_b32 s63, s{S_R1}, 6
s_add_u32 s63, s63, s{S_CB}
s_lshl_b32 s64, s{S_R2}, 6
s_add_u32 s64, s64, s{S_CB}''')
    for sl in range(4):
        a(f'''s_add_u32 s65, s63, {MRING + sl*9216}
buffer_store_dword v24, v{MST}, {WS}, s65 offen sc1
s_add_u32 s65, s64, {MRING + sl*9216}
buffer_store_dword v24, v{MST}, {WS}, s65 offen sc1''')
    a(f'{L}:')

def load_weights(a):
    srd(a, R0, P_WQ, WB); srd(a, R1, P_WK, WB); srd(a, R2, P_WV, WB); srd(a, 92, P_WO, WB)
    a(f's_mul_i32 s{S_STG}, s{S_WAVE}, 36864\ns_add_u32 s{S_STG}, s{S_STG}, {WBASE}')
    addr_regs(a, S_STG, 20)
    a(f'''v_lshl_add_u32 v26, v23, 3, v24
v_lshlrev_b32 v26, 6, v26
v_lshl_add_u32 v26, v25, 3, v26
v_add_u32 v26, s{S_STG}, v26
v_lshlrev_b32 v27, 4, v24
v_lshl_add_u32 v27, v23, 1, v27
v_lshlrev_b32 v27, 6, v27
v_lshl_add_u32 v27, v25, 3, v27
v_add_u32 v27, s{S_STG}, v27
v_and_b32 v28, 1, v23
v_lshlrev_b32 v28, 4, v28
v_lshrrev_b32 v29, 1, v23
v_lshl_add_u32 v28, v29, 3, v28
v_lshrrev_b32 v29, 1, v24
v_lshl_add_u32 v28, v29, 2, v28
v_and_b32 v29, 1, v24
v_add_u32 v28, v28, v29
v_lshlrev_b32 v29, 5, v28
v_lshl_add_u32 v29, v25, 3, v29
v_add_u32 v29, s{S_STG}, v29
v_lshlrev_b32 v28, 7, v28
v_lshl_add_u32 v28, v25, 3, v28
v_add_u32 v28, s{S_STG}, v28
v_lshlrev_b32 v{L16}, 4, v0
v_add_u32 v{WL}, s{S_STG}, v{L16}
s_lshl_b32 s90, s{S_HEAD}, 8
s_lshl_b32 s63, s{S_WAVE}, 6
s_add_u32 s90, s90, s63
s_mul_i32 s91, s{S_HEAD}, 147456
s_lshl_b32 s63, s{S_WAVE}, 5
s_add_u32 s96, s91, s63
s_lshl_b32 s63, s{S_WAVE}, 8
s_add_u32 s91, s91, s63
s_barrier''')
    T = 40
    def wb(s):
        for i in range(4): a(f'ds_write_b128 v{WL}, {vr(T+4*i,4)} offset:{s*4096+1024*i}')
        a('s_waitcnt lgkmcnt(0)')
    def home(m, t, p): return ('v', T + 8 * p) if (m, t) in LDSCH else H[(m, t, p)]
    reg, lds = [], []
    for m, r in (('q', R0), ('k', R1), ('v', R2)):
        for t in range(9):
            reads = []
            for ph in range(2):
                for hf in range(2):
                    for sec in range(2):
                        if t < 8: reads.append((pair(home(m, t, ph), 2*hf+sec), 27, hf*512 + sec*64 + ph*32))
                        else: reads.append((pair(home(m, t, ph), 2*hf+sec), 26, hf*2048 + sec*256 + ph*32))
            c = dict(srd=f's[{r}:{r+3}]', voff=20, sbase=90, consts=[(64*t+16*i)*8192 for i in range(4)], reads=reads)
            if (m, t) in LDSCH: c.update(slot=LDSCH.index((m, t)), post=wb); lds.append(c)
            else: reg.append(c)
    for wp in range(4):
        for Q in range(2):
            reads = [(pair(H[('o', 4*Q+x, wp >> 1)], 2*(wp & 1)+sec), 28, sec*256 + x*32) for x in range(4) for sec in range(2)]
            reg.append(dict(srd='s[92:95]', voff=21, sbase=91, consts=[(32*wp+8*i)*1152 + 128*Q for i in range(4)], reads=reads))
    reads = [(pair(home('o', 8, wp >> 1), 2*(wp & 1)+sec), 29, wp*1024 + sec*64) for wp in range(4) for sec in range(2)]
    lds.append(dict(srd='s[92:95]', voff=22, sbase=96, consts=[32*i*1152 + 1024 for i in range(4)], reads=reads, slot=8, post=wb))
    n = len(reg); order = [(n + i) % 9 for i in range(9)]
    lds.sort(key=lambda c: order.index(c['slot']))
    def hook(younger):
        L = a.uniq('L_nr')
        a(f's_cmp_ge_u32 s{S_ROLE}, 3\ns_cbranch_scc1 {L}')
        register(a, younger, 32)
        a(f'{L}:')
    run_chunks(a, reg + lds, 9, S_STG, hook=hook)

def setup(a):
    ids(a)
    srd(a, R0, P_MEM0, 9216)
    a(f'''s_lshl_b32 s63, s{S_WAVE}, 11
v_add_u32 v{GA}, s63, v{L16}
s_lshl_b32 s63, s{S_WAVE}, 8
s_add_u32 s63, s63, 8192
v_lshlrev_b32 v{G3}, 4, v21
v_add_u32 v{G3}, s63, v{G3}
s_lshl_b32 s63, s{S_WAVE}, 2
s_add_u32 s63, s63, {MP_}
v_add_u32 v{SM}, s63, v{L16}
v_bfe_u32 v23, v0, 1, 1
v_and_b32 v24, 1, v0
v_lshrrev_b32 v25, 2, v21
s_mov_b32 s{S_HALF}, 0xcccccccc
s_mov_b32 s{S_HALF+1}, 0xcccccccc
s_mov_b32 s{S_C}, {0x3e0293ee}
v_mov_b32 v26, 0x3f80
v_mov_b32 v27, 0x3f800000
v_cmp_eq_u32 vcc, 1, v24
v_cndmask_b32 v28, v26, v27, vcc
v_cmp_eq_u32 vcc, v25, v20
v_cndmask_b32 v{SEL}, 0, v28, vcc
v_mov_b32 v{SEL+1}, 0
v_mov_b32 v{SEL+2}, 0
v_mov_b32 v{SEL+3}, v{SEL}
v_and_b32 v29, 1, v25
v_cmp_eq_u32 vcc, 1, v29
v_cndmask_b32 v28, v26, v27, vcc
v_and_b32 v29, 2, v25
v_add_u32 v29, v29, v24
v_lshl_add_u32 v29, v23, 2, v29''')
    for k in range(4): a(f'v_cmp_eq_u32 vcc, {k}, v29\nv_cndmask_b32 v{RSEL+k}, 0, v28, vcc')
    a(f'''v_lshrrev_b32 v28, 1, v20
v_lshlrev_b32 v28, 4, v28
v_and_b32 v29, 13, v21
v_add_u32 v28, v28, v29
v_and_b32 v29, 1, v20
v_lshl_add_u32 v28, v29, 1, v28
v_lshlrev_b32 v{OW}, 4, v28
s_lshr_b32 s63, s{S_WAVE}, 1
s_lshl_b32 s63, s63, 11
s_and_b32 s64, s{S_WAVE}, 1
s_lshl_b32 s64, s64, 9
s_add_u32 s63, s63, s64
s_add_u32 s63, s63, {O0_}
v_add_u32 v{OW}, s63, v{OW}''')
    a(f'''v_lshl_add_u32 v28, v25, 1, v24
v_mul_u32_u24 v28, 1152, v28
v_lshlrev_b32 v29, 6, v23
v_lshl_add_u32 v29, v20, 3, v29
v_add_u32 v29, v29, v28
v_lshlrev_b32 v30, 2, v23
v_lshl_add_u32 v30, v20, 5, v30
v_add_u32 v30, v30, v28
s_lshl_b32 s63, s{S_WAVE}, 8''')
    for q in range(2):
        for u in range(4):
            a(f'buffer_load_ushort v{32+4*q+u}, v29, s[{R0}:{R0+3}], s63 offen offset:{128*q+2*u}')
            a(f'buffer_load_ushort v{48+4*q+u}, v29, s[{R0}:{R0+3}], s63 offen offset:{128*q+2*u+32}')
    for u in range(4): a(f'buffer_load_dword v{40+u}, v30, s[{R0}:{R0+3}], 0 offen offset:{1024+8*u}')
    a('s_waitcnt vmcnt(0)')
    for i in range(8): a(f'v_lshl_or_b32 v{32+i}, v{48+i}, 16, v{32+i}')
    a(f'''ds_write_b128 v{GA}, v[32:35]
ds_write_b128 v{GA}, v[36:39] offset:1024
ds_write_b128 v{L16}, v[40:43] offset:8192''')
    census(a, 44)
    a(f'''v_mov_b32 v26, 0x4444
v_mov_b32 v27, 0xeeee
v_cndmask_b32 v{IDX}, v26, v27, s[{S_HALF}:{S_HALF+1}]
s_mov_b32 s{S_STEP}, 0
s_lshl_b32 s{S_FI}, s{S_L}, 13
s_add_u32 s{S_FI}, s{S_FI}, s{S_R1}
s_lshl_b32 s{S_KV}, s{S_FI}, 12
s_add_u32 s{S_KV}, s{S_KV}, {KV}
s_lshl_b32 s{S_KM}, s{S_FI}, 11
s_add_u32 s{S_KM}, s{S_KM}, {KM}
s_lshl_b32 s{S_FI}, s{S_FI}, 2
s_add_u32 s{S_T0}, s{S_FI}, {KVF}''')
    poll(a, f'buffer_load_dword v{FLG}, v{SEL+1}, {WS}, s{S_T0} offen sc1', f'v_cmp_eq_u32 vcc, 0, v{FLG}', sleep=2)
    a(f'v_mov_b32 v{FLG}, 0')

def zero(a, r, n):
    for i in range(0, n, 2): a(f'v_mov_b64 {vr(r+i,2)}, 0')

def ldw(ds, ch, p, dst):
    s = LDSCH.index(ch)
    ds.op(f'ds_read_b128 {vr(dst,4)}, v{WL} offset:{s*4096+p*2048}')
    return ds.op(f'ds_read_b128 {vr(dst+4,4)}, v{WL} offset:{s*4096+p*2048+1024}')

def loop(a, st, tag):
    ds = SB(a, 'lgkmcnt', 15); vm = SB(a, 'vmcnt', 63)
    P = OPT.get('cprof')
    def cs(i):
        if P: a(f's_memtime s[100:101]\ns_waitcnt lgkmcnt(0)\ns_sub_u32 s99, s100, s98\ns_mov_b32 s98, s100\ns_add_u32 s{16+i}, s{16+i}, s99'); ds.done = ds.n
    def prefetch_k():
        for (dst, ch, p) in ((W0, ('k', 0), 0), (W1, ('k', 0), 1), (B, ('k', 1), 0), (C, ('k', 1), 1)): ldw(ds, ch, p, dst)
    smf = lambda d, am, b: a(f'v_smfmac_f32_16x16x64_bf16 {vr(d,4)}, {vr(am,4)}, {b}, v{IDX}')
    if P:
        for i in range(16): a(f's_mov_b32 s{16+i}, 0')
        a('s_memtime s[100:101]\ns_waitcnt lgkmcnt(0)\ns_mov_b32 s98, s100')
    prefetch_k(); zero(a, A, 16)
    a(f's_waitcnt lgkmcnt(0)\ns_barrier\nL_step{tag}:')
    ds.reset(); vm.reset()
    mt = {}
    def rdm(t, nb, key): mt[key] = ds.op(f'ds_read_b128 {vr(MB+4*(t%nb),4)}, v{L16} offset:{1024*t}')
    for t in range(3): rdm(t, 3, t)
    a(f'''s_and_b32 s{S_T0}, s{S_STEP}, 1
s_mul_i32 s{S_PC}, s{S_T0}, {PSLOT}
s_sub_u32 s{S_PO}, {PSLOT}, s{S_PC}
s_add_u32 s{S_PC}, s{S_PC}, s{S_CB}
s_add_u32 s{S_PO}, s{S_PO}, s{S_CB}
s_add_u32 s{S_T0}, s{S_STEP}, 1
s_and_b32 s{S_T0}, s{S_T0}, 3
s_mul_i32 s{S_MC}, s{S_T0}, 9216
s_add_u32 s{S_T0}, s{S_STEP}, 2
s_and_b32 s{S_T0}, s{S_T0}, 3
s_mul_i32 s{S_MP}, s{S_T0}, 9216
s_add_u32 s{S_T0}, s{S_CB}, {MRING}
s_add_u32 s{S_MC}, s{S_MC}, s{S_T0}
s_add_u32 s{S_MP}, s{S_MP}, s{S_T0}''')
    kbuf = {0: (W0, W1), 1: (B, C), 3: (W0, W1), 4: (B, C), 6: (W0, W1)}
    wt = {}
    for t in range(9):
        ds.wait(mt[t])
        m = MB + 4 * (t % 3)
        smf(A, m, f8(H[('q', t, 0)])); smf(A + 4, m, f8(H[('q', t, 1)]))
        if t in wt: ds.wait(wt[t])
        for p in range(2): smf(A + 8 + 4*p, m, vr(kbuf[t][p], 8) if t in kbuf else f8(H[('k', t, p)]))
        if t + 3 < 9: rdm(t + 3, 3, t + 3)
        if t in (0, 1, 3):
            n = t + 3; ldw(ds, ('k', n), 0, kbuf[n][0]); wt[n] = ldw(ds, ('k', n), 1, kbuf[n][1])
        if t == 4:
            vm.op(f'buffer_load_dwordx4 {vr(C,4)}, v{L16}, {WS}, s{S_KV} offen')
            tk = vm.op(f'buffer_load_dwordx4 {vr(C+4,4)}, v{L16}, {WS}, s{S_KV} offen offset:1024')
            a(f'v_mov_b64 {vr(B,2)}, -1\nv_mov_b64 {vr(B+2,2)}, -1\ns_add_u32 s{S_T0}, s{S_PO}, 32768')
            vm.op(f'buffer_store_dwordx4 {vr(B,4)}, v{PST}, {WS}, s{S_PO} offen {st}')
        if t == 5:
            vm.op(f'buffer_store_dwordx4 {vr(B,4)}, v{PST}, {WS}, s{S_T0} offen {st}')
            vm.op(f'buffer_store_dword v{B}, v{PSX}, {WS}, s{S_PO} offen {st}')
        if t == 6:
            ldw(ds, ('v', 0), 0, W0); wt['v0'] = ldw(ds, ('v', 0), 1, W1)
            a(f's_lshl_b32 s{S_T0}, s{S_R1}, 6\ns_add_u32 s{S_T0}, s{S_T0}, s{S_MP}\ns_lshl_b32 s{S_T1}, s{S_R2}, 6\ns_add_u32 s{S_T1}, s{S_T1}, s{S_MP}')
            vm.op(f'buffer_store_dword v{B}, v{MST}, {WS}, s{S_T0} offen {st}')
            tp = vm.op(f'buffer_store_dword v{B}, v{MST}, {WS}, s{S_T1} offen {st}')
            rdm(0, 2, 'v0m')
        if t == 7:
            zero(a, B, 8)
            rdm(1, 2, 'v1m')
    cs(0)
    vstate = dict(t=0)
    def vstep(n=1):
        for _ in range(n):
            t = vstate['t']
            if t >= 9: return
            ds.wait(mt[f'v{t}m'])
            if f'v{t}' in wt: ds.wait(wt[f'v{t}'])
            m = MB + 4 * (t % 2)
            for p in range(2): smf(B + 4*p, m, vr((W0, W1)[p], 8) if ('v', t) in LDSCH else f8(H[('v', t, p)]))
            if t + 2 < 9: rdm(t + 2, 2, f'v{t+2}m')
            if t in (0, 3): ldw(ds, ('v', t+3), 0, W0); wt[f'v{t+3}'] = ldw(ds, ('v', t+3), 1, W1)
            if t == 6: ldw(ds, ('o', 8), 0, W0); wt['o'] = ldw(ds, ('o', 8), 1, W1)
            vstate['t'] = t + 1
    vstep(2)
    for i in range(4):
        a(f'v_add_f32 v{A+4*i}, v{A+4*i}, v{A+4*i+2}\nv_add_f32 v{A+4*i+1}, v{A+4*i+1}, v{A+4*i+3}')
        a(f'v_cvt_pk_bf16_f32 v{TMP+i}, v{A+4*i}, v{A+4*i+1}')
    for i in range(4):
        a(f'v_mfma_f32_16x16x16_bf16 {vr(A+4*i,4)}, {vr(TMP+2*(i>>1),2)}, {vr(SEL+2*(i&1),2)}, 0')
    vstep(1)
    for j in range(2):
        b = A + 8 * j
        for q in range(4): a(f'v_cvt_pk_bf16_f32 v{b+q}, v{b+2*q}, v{b+2*q+1}')
    QF_, KF_ = A, A + 8
    vm.wait(tk)
    a(f'v_mfma_f32_16x16x32_bf16 {vr(A+4,4)}, {vr(C,4)}, {vr(QF_,4)}, 0')
    a(f'v_mfma_f32_16x16x32_bf16 {vr(A+12,4)}, {vr(C+4,4)}, {vr(QF_,4)}, 0')
    a(f'v_mfma_f32_16x16x32_bf16 {vr(TMP,4)}, {vr(KF_,4)}, {vr(QF_,4)}, 0')
    vm.op(f'buffer_load_dwordx4 {vr(C,4)}, v{L16}, {WS}, s{S_KV} offen offset:2048')
    tv = vm.op(f'buffer_load_dwordx4 {vr(C+4,4)}, v{L16}, {WS}, s{S_KV} offen offset:3072')
    vm.op(f'buffer_store_dwordx4 {vr(KF_,4)}, v{L16}, {WS}, s{S_KM} offen sc1')
    vstep(1)
    hm = f's[{S_HALF}:{S_HALF+1}]'
    for r in range(4): a(f'v_cndmask_b32 v{A+4+r}, v{A+4+r}, v{A+12+r}, {hm}')
    a(f'v_cndmask_b32 v{TMP}, v{TMP}, v{TMP+1}, {hm}')
    ds.op(f'ds_write_b128 v{GA}, {vr(A+4,4)} offset:{XB_}')
    tw = ds.op(f'ds_write_b32 v{SM}, v{TMP}')
    cs(1)
    Lk = a.uniq('L_kvok')
    a(f'''s_add_u32 s{S_T2}, s{S_FI}, {KVF + 512}
v_cmp_eq_u32 vcc, 0, v{FLG}
s_cmp_eq_u32 s{S_STEP}, 63
s_cbranch_scc1 {Lk}
s_cbranch_vccz {Lk}''')
    poll(a, f'buffer_load_dword v{FLG}, v{SEL+1}, {WS}, s{S_T2} offen sc1', f'v_cmp_eq_u32 vcc, 0, v{FLG}', sleep=1)
    a(f'{Lk}:\nv_lshlrev_b32 v{TCH}, 2, v{L16}\ns_add_u32 s{S_T1}, s{S_KV}, {128*4096}')
    vm.op(f'buffer_load_dword v{TCH}, v{TCH}, {WS}, s{S_T1} offen')
    vm.op(f'buffer_load_dword v{FLG}, v{SEL+1}, {WS}, s{S_T2} offen offset:512 sc1')
    vstep(1)
    ds.wait(tw)
    a('s_barrier')
    tr = [ds.op(f'ds_read_b128 {vr(A+4*w,4)}, v{L16} offset:{XB_+2048*w}') for w in range(4)]
    tm = ds.op(f'ds_read_b128 {vr(TMP,4)}, v{L16} offset:{MP_}')
    vstep(2)
    ds.wait(tr[1])
    for r in range(4): a(f'v_add_f32 v{A+r}, v{A+r}, v{A+4+r}')
    ds.wait(tr[3])
    for r in range(4): a(f'v_add_f32 v{A+8+r}, v{A+8+r}, v{A+12+r}')
    ds.wait(tm)
    a(f'v_add_f32 v{TMP}, v{TMP}, v{TMP+1}\nv_add_f32 v{TMP+2}, v{TMP+2}, v{TMP+3}')
    for r in range(4): a(f'v_add_f32 v{A+r}, v{A+r}, v{A+8+r}')
    a(f'v_add_f32 v{A+4}, v{TMP}, v{TMP+2}')
    cs(2)
    MX, T2 = A + 5, A + 6
    def allred(op, x):
        a(f'''{op}_dpp v{x}, v{x}, v{x} quad_perm:[2,3,0,1] row_mask:0xf bank_mask:0xf
v_mov_b32 v{T2}, v{x}
v_permlane16_swap_b32 v{x}, v{T2}
{op} v{x}, v{x}, v{T2}
v_mov_b32 v{T2}, v{x}
v_permlane32_swap_b32 v{x}, v{T2}
{op} v{x}, v{x}, v{T2}''')
    a(f'v_max3_f32 v{MX}, v{A}, v{A+1}, v{A+2}\nv_max3_f32 v{MX}, v{MX}, v{A+3}, v{A+4}')
    vstep(2)
    allred('v_max_f32', MX)
    a(f'v_mul_f32 v{MX}, s{S_C}, v{MX}')
    for r in range(5): a(f'v_fma_f32 v{A+r}, v{A+r}, s{S_C}, -v{MX}')
    for r in range(5): a(f'v_exp_f32 v{A+r}, v{A+r}')
    a(f'''v_add_f32 v{B}, v{B}, v{B+2}
v_add_f32 v{B+1}, v{B+1}, v{B+3}
v_add_f32 v{B+4}, v{B+4}, v{B+6}
v_add_f32 v{B+5}, v{B+5}, v{B+7}
v_cvt_pk_bf16_f32 v{B}, v{B}, v{B+1}
v_cvt_pk_bf16_f32 v{B+1}, v{B+4}, v{B+5}
v_mov_b32 v{B+2}, v{B+1}
v_mov_b32 v{B+3}, v{B+1}''')
    PX, PM, PV = TMP, B + 4, A + 8
    qp = 'quad_perm:[2,3,0,1] row_mask:0xf bank_mask:0xf'
    a(f'''v_cvt_pk_bf16_f32 v{PX}, v{A}, v{A+1}
v_cvt_pk_bf16_f32 v{PX+1}, v{A+2}, v{A+3}
v_mov_b32_dpp v{PM}, v{A+4} {qp}
v_mov_b32 v{PM+1}, 0
v_mov_b32_dpp v{PX+2}, v{PX} {qp}
v_mov_b32_dpp v{PX+3}, v{PX+1} {qp}
v_cvt_pk_bf16_f32 v{PM}, v{A+4}, v{PM}''')
    vm.wait(tv)
    for p in range(2): a(f'v_mfma_f32_16x16x32_bf16 {vr(PV+4*p,4)}, {vr(C+4*p,4)}, {vr(PX,4)}, 0')
    for p in range(2): a(f'v_mfma_f32_16x16x16_bf16 {vr(PV+4*p,4)}, {vr(B+2*p,2)}, {vr(PM,2)}, {vr(PV+4*p,4)}')
    vm.op(f'buffer_store_dwordx2 {vr(B,2)}, v{L16}, {WS}, s{S_KM} offen offset:1024 sc1')
    a(f's_cmp_eq_u32 s{S_STEP}, 63\ns_cbranch_scc1 L_last{tag}')
    a(f'v_add_f32 v{A}, v{A}, v{A+1}\nv_add_f32 v{A+2}, v{A+2}, v{A+3}\nv_add_f32 v{A}, v{A}, v{A+4}\nv_add_f32 v{MX}, v{A}, v{A+2}')
    allred('v_add_f32', MX)
    a(f'v_rcp_f32 v{MX}, v{MX}')
    for r in range(8): a(f'v_mul_f32 v{PV+r}, v{PV+r}, v{MX}')
    for q in range(4): a(f'v_cvt_pk_bf16_f32 v{A+q}, v{PV+2*q}, v{PV+2*q+1}')
    a(f's_not_b64 exec, {hm}')
    tw = ds.op(f'ds_write_b128 v{OW}, {vr(A,4)}')
    a('s_mov_b64 exec, -1')
    cs(3)
    ACC = A + 8
    zero(a, ACC, 36)
    ds.wait(tw)
    a('s_barrier')
    ds.op(f'ds_read_b128 {vr(A,4)}, v{L16} offset:{O0_}')
    to = ds.op(f'ds_read_b128 {vr(A+4,4)}, v{L16} offset:{O1_}')
    a(f's_add_u32 s{S_T0}, s{S_PC}, 32768')
    vm.wait(tp)
    ds.wait(to)
    cs(4)
    def wo(T):
        for ks in range(2): smf(ACC + 4*T, A + 4*ks, f8(H[('o', T, ks)]) if T < 8 else vr((W0, W1)[ks], 8))
    def fold(T, dst):
        b = ACC + 4 * T
        a(f'v_add_f32 v{b}, v{b}, v{b+2}\nv_add_f32 v{b+1}, v{b+1}, v{b+3}\nv_cvt_pk_bf16_f32 v{dst}, v{b}, v{b+1}\nv_min_u32 v{dst}, -2, v{dst}')
    for T in range(9):
        wo(T)
        if T >= 2:
            U = T - 2; fold(U, ACC + 16*(U >> 2) + (U & 3))
            if U == 3: vm.op(f'buffer_store_dwordx4 {vr(ACC,4)}, v{PST}, {WS}, s{S_PC} offen {st}')
    fold(7, ACC + 19)
    vm.op(f'buffer_store_dwordx4 {vr(ACC+16,4)}, v{PST}, {WS}, s{S_T0} offen {st}')
    fold(8, ACC + 32)
    vm.op(f'buffer_store_dword v{ACC+32}, v{PSX}, {WS}, s{S_PC} offen {st}')
    cs(5)
    prefetch_k()
    a(f'''s_lshl_b32 s{S_T0}, s{S_R1}, 11
s_add_u32 s{S_T0}, s{S_T0}, s{S_PC}
s_lshl_b32 s{S_T1}, s{S_R2}, 11
s_add_u32 s{S_T1}, s{S_T1}, s{S_PC}
s_lshl_b32 s{S_PO}, s{S_R1}, 6
s_add_u32 s{S_PO}, s{S_PO}, s{S_MC}
s_lshl_b32 s{S_MP}, s{S_R2}, 6
s_add_u32 s{S_MP}, s{S_MP}, s{S_MC}
s_mov_b32 s{S_TMO}, {TMO}
s_waitcnt vmcnt(0)''')
    cs(6)
    dp = lambda n: f'row_ror:{n} row_mask:0xf bank_mask:0xf'
    def red(two):
        L = a.uniq('L_red'); D0, D1, X = MB, MB + 4, MB + 8
        a(f'''{L}:
buffer_load_dwordx4 {vr(A,4)}, v{L16}, {WS}, s{S_T0} offen sc1
buffer_load_dwordx4 {vr(A+4,4)}, v{L16}, {WS}, s{S_T0} offen offset:1024 sc1''')
        if two: a(f'''buffer_load_dwordx4 {vr(A+8,4)}, v{L16}, {WS}, s{S_T1} offen sc1
buffer_load_dwordx4 {vr(A+12,4)}, v{L16}, {WS}, s{S_T1} offen offset:1024 sc1''')
        a(f'''s_sub_u32 s{S_TMO}, s{S_TMO}, 1
s_cbranch_scc1 L_abort
s_waitcnt vmcnt(0)
v_mfma_f32_16x16x32_bf16 {vr(D0,4)}, {vr(RSEL,4)}, {vr(A,4)}, 0
v_mfma_f32_16x16x32_bf16 {vr(D0,4)}, {vr(RSEL,4)}, {vr(A+4,4)}, {vr(D0,4)}''')
        if two: a(f'''v_mfma_f32_16x16x32_bf16 {vr(D1,4)}, {vr(RSEL,4)}, {vr(A+8,4)}, 0
v_mfma_f32_16x16x32_bf16 {vr(D1,4)}, {vr(RSEL,4)}, {vr(A+12,4)}, {vr(D1,4)}''')
        a(f'''v_max3_u32 v{X}, v{A}, v{A+1}, v{A+2}
v_max3_u32 v{X+1}, v{A+3}, v{A+4}, v{A+5}
v_max3_u32 v{X}, v{X}, v{A+6}, v{A+7}''')
        if two: a(f'''v_max3_u32 v{X+1}, v{X+1}, v{A+8}, v{A+9}
v_max3_u32 v{X}, v{X}, v{A+10}, v{A+11}
v_max3_u32 v{X+1}, v{X+1}, v{A+12}, v{A+13}
v_max3_u32 v{X}, v{X}, v{A+14}, v{A+15}''')
        a(f'v_max_u32 v{X}, v{X}, v{X+1}\nv_cmp_eq_u32 vcc, -1, v{X}\ns_cbranch_vccnz {L}')
        Ds = (D0, D1) if two else (D0,)
        for n in (4, 8):
            for d in Ds: a(f'v_add_f32_dpp v{d}, v{d}, v{d} {dp(n)}\nv_add_f32_dpp v{d+1}, v{d+1}, v{d+1} {dp(n)}')
        for d in Ds: a(f'v_cvt_pk_bf16_f32 v{d}, v{d}, v{d+1}\nv_min_u32 v{d}, -2, v{d}')
        a(f's_mov_b64 exec, s[{S_M16}:{S_M16+1}]\nbuffer_store_dword v{D0}, v{MST}, {WS}, s{S_PO} offen {st}')
        if two: a(f'buffer_store_dword v{D1}, v{MST}, {WS}, s{S_MP} offen {st}')
        a('s_mov_b64 exec, -1')
    L1, L2 = a.uniq('L_one'), a.uniq('L_gat')
    a(f's_cmp_lg_u32 s{S_DD}, 0\ns_cbranch_scc1 {L1}')
    red(True)
    a(f's_branch {L2}\n{L1}:')
    red(False)
    a(f'{L2}:')
    cs(7)
    zero(a, A, 16)
    a('s_waitcnt vmcnt(0)')
    G = MB
    L = a.uniq('L_g')
    a(f'''{L}:
buffer_load_dwordx4 {vr(G,4)}, v{GA}, {WS}, s{S_MC} offen sc1
buffer_load_dwordx4 {vr(G+4,4)}, v{GA}, {WS}, s{S_MC} offen offset:1024 sc1
buffer_load_dwordx4 {vr(G+8,4)}, v{G3}, {WS}, s{S_MC} offen sc1
s_sub_u32 s{S_TMO}, s{S_TMO}, 1
s_cbranch_scc1 L_abort
s_waitcnt vmcnt(0)
v_max3_u32 v{TCH}, v{G}, v{G+1}, v{G+2}
v_max3_u32 v{TCH}, v{TCH}, v{G+3}, v{G+4}
v_max3_u32 v{TCH}, v{TCH}, v{G+5}, v{G+6}
v_max3_u32 v{TCH}, v{TCH}, v{G+7}, v{G+8}
v_max3_u32 v{TCH}, v{TCH}, v{G+9}, v{G+10}
v_max_u32 v{TCH}, v{TCH}, v{G+11}
v_cmp_eq_u32 vcc, -1, v{TCH}
s_cbranch_vccnz {L}
ds_write_b128 v{GA}, {vr(G,4)}
ds_write_b128 v{GA}, {vr(G+4,4)} offset:1024
ds_write_b128 v{G3}, {vr(G+8,4)}''')
    cs(8)
    def kmflag():
        a(f'''s_add_u32 s{S_T0}, s{S_FI}, {KMF}
s_mov_b64 exec, 1
buffer_store_dword v{IDX}, v{SEL+1}, {WS}, s{S_T0} offen sc1
s_mov_b64 exec, -1''')
    kmflag()
    a(f'''s_add_u32 s{S_STEP}, s{S_STEP}, 1
s_add_u32 s{S_FI}, s{S_FI}, 512
s_add_u32 s{S_KV}, s{S_KV}, {128*4096}
s_add_u32 s{S_KM}, s{S_KM}, {128*2048}
s_waitcnt lgkmcnt(0)
s_barrier''')
    cs(9)
    a(f's_branch L_step{tag}\nL_last{tag}:\ns_waitcnt vmcnt(0)')
    kmflag()
    if P:
        for i in range(16): a(f'v_mov_b32 v20, s{16+i}\ns_lshl_b32 s100, s{S_L}, 7\ns_add_u32 s100, s100, s{S_R1}\ns_lshl_b32 s100, s100, 6\ns_add_u32 s100, s100, {PROF+65536+4*i}\nbuffer_store_dword v20, v{SEL+1}, {WS}, s100 offen')
    stamp(a, 6, 20)
    a('s_endpgm')

def chain_role(a):
    load_weights(a)
    stamp(a, 3, 32)
    setup(a)
    stamp(a, 5, 20)
    a(f's_cmp_lg_u32 s{S_SAFE}, 0\ns_cbranch_scc1 L_chain_safe')
    loop(a, '', 'F')
    a('L_chain_safe:')
    loop(a, 'sc1', 'S')
```

```python
from asmlib import *
KNAME = 'interleave_layers__ssm_conv_h3__memory_aug_recurrent_mem_tr__prompt_kernel'
CF, HF, KVF, KMF, QF = 0x0, 0x4000, 0x10000, 0x20000, 0x30000
YT, YR, X1, H1 = 0x100000, 0x400000, 0x700000, 0xA00000
LSTR = 0x600000
CP, CPSTR, PSLOT, MRING = 0x1400000, 0x100000, 144 * 2048, 0xC0000
QP, QPSTR, QSLOT = 0x1800000, 0x300000, 32 * 32 * 1152
KM, KV = 0x2800000, 0x5000000
PROF = 0x9000000
NB = 2048 * 576 * 2
WB = 576 * 4096 * 2
S_WG, S_WAVE, S_ROLE, S_HEAD, S_SAFE, S_GEN = 2, 3, 4, 5, 6, 7
WS, DBG = 's[8:11]', 's[12:15]'
P_AQ, P_AK, P_AV, P_SH, P_SSMK, P_SSMD, P_BX, P_MEM0 = 16, 18, 20, 22, 24, 26, 28, 30
P_WQ, P_WK, P_WV, P_WO, P_SEG, P_OUT, P_DBG, P_WS = 32, 34, 36, 38, 40, 42, 44, 46
R0, R1, R2 = 48, 52, 56
S_TMO, S_XCC, S_RANK = 60, 61, 62
TMO = 1 << 20
def srd(a, r, ptr, nbytes):
    a(f'''s_mov_b32 s{r}, s{ptr}
s_mov_b32 s{r+1}, s{ptr+1}
s_mov_b32 s{r+2}, {nbytes}
s_mov_b32 s{r+3}, 0x20000''')

def poll(a, ld, chk, sleep=2, pre=''):
    L = a.uniq('L_poll'); D = a.uniq('L_pdone')
    a(f's_mov_b32 s{S_TMO}, {TMO}')
    a(f'{L}:')
    a(ld)
    a('s_waitcnt vmcnt(0)')
    a(chk)
    a(f's_cbranch_vccz {D}')
    if sleep: a(f's_sleep {sleep}')
    a(f'''s_sub_u32 s{S_TMO}, s{S_TMO}, 1
s_cbranch_scc1 L_abort
s_branch {L}
{D}:''')

def entry(a):
    a(f'''s_cmp_ge_u32 s2, 256
s_cbranch_scc1 L_abort
s_load_dwordx16 s[16:31], s[0:1], 0
s_load_dwordx16 s[32:47], s[0:1], 64
s_getreg_b32 s{S_XCC}, hwreg(HW_REG_XCC_ID, 0, 3)
v_lshrrev_b32 v1, 6, v0
v_and_b32 v0, 63, v0
v_readfirstlane_b32 s{S_WAVE}, v1
s_mov_b32 s{S_ROLE}, s{S_XCC}
s_lshr_b32 s{S_HEAD}, s2, 3
s_mov_b32 s{S_SAFE}, 0
s_mov_b32 s{S_GEN}, 0
s_mov_b32 s{S_RANK}, 0
s_waitcnt lgkmcnt(0)''')
    srd(a, 8, P_WS, 1 << 28)
    srd(a, 12, P_DBG, 256)
    a(f'''s_lshl_b32 s63, s2, 10
s_lshl_b32 s64, s{S_WAVE}, 8
s_add_u32 s63, s63, s64
v_lshlrev_b32 v1, 4, v0
v_mov_b32 v4, 0
v_mov_b32 v5, 0
v_mov_b32 v6, 0
v_mov_b32 v7, 0
s_mov_b64 exec, 0xffff
buffer_store_dwordx4 v[4:7], v1, {WS}, s63 offen sc1
s_mov_b64 exec, -1
L_restart:''')

def register(a, younger, vt):
    L = a.uniq('L_reg')
    a(f'''s_waitcnt vmcnt({younger})
s_barrier
s_cmp_lg_u32 s{S_WAVE}, 0
s_cbranch_scc1 {L}
s_lshl_b32 s63, 1, s{S_HEAD}
s_lshl_b32 s64, s{S_ROLE}, 3
s_lshl_b32 s65, s{S_GEN}, 7
s_add_u32 s64, s64, s65
v_mov_b32 v{vt}, s63
v_mov_b32 v{vt+1}, 0x100
v_mov_b32 v{vt+2}, s64
s_mov_b64 exec, 1
buffer_atomic_add_x2 v[{vt}:{vt+1}], v{vt+2}, {DBG}, 0 offen
s_mov_b64 exec, -1
{L}:''')

def census(a, vt):
    L = a.uniq('L_cen'); D = a.uniq('L_cend')
    a(f'''s_mov_b32 s{S_TMO}, {TMO}
v_and_b32 v{vt+2}, 7, v0
v_lshlrev_b32 v{vt+2}, 3, v{vt+2}
s_lshl_b32 s63, s{S_GEN}, 7
{L}:
buffer_load_dwordx2 v[{vt}:{vt+1}], v{vt+2}, {DBG}, s63 offen sc1
s_waitcnt vmcnt(0)
v_not_b32 v{vt}, v{vt}
v_xor_b32 v{vt+1}, 0x2000, v{vt+1}
v_or_b32 v{vt}, v{vt}, v{vt+1}
v_cmp_ne_u32 vcc, 0, v{vt}
s_cbranch_vccz {D}
v_xor_b32 v{vt+1}, 0x2000, v{vt+1}
v_lshrrev_b32 v{vt+1}, 8, v{vt+1}
v_cmp_ne_u32 vcc, 32, v{vt+1}
v_add_u32_dpp v{vt+1}, v{vt+1}, v{vt+1} quad_perm:[1,0,3,2] row_mask:0xf bank_mask:0xf
v_add_u32_dpp v{vt+1}, v{vt+1}, v{vt+1} quad_perm:[2,3,0,1] row_mask:0xf bank_mask:0xf
v_add_u32_dpp v{vt+1}, v{vt+1}, v{vt+1} row_half_mirror row_mask:0xf bank_mask:0xf
v_readfirstlane_b32 s64, v{vt+1}
s_cmp_ge_u32 s64, 256
s_cbranch_scc1 L_renumber
s_sleep 8
s_sub_u32 s{S_TMO}, s{S_TMO}, 1
s_cbranch_scc1 L_abort
s_branch {L}
{D}:''')

def renumber(a):
    a(f'''L_renumber:
s_waitcnt vmcnt(0) lgkmcnt(0)
s_cmp_lg_u32 s{S_GEN}, 0
s_cbranch_scc1 L_abort
s_mov_b32 s{S_GEN}, 1
s_cbranch_vccz L_ticket
s_mov_b32 s{S_SAFE}, 1
s_and_b32 s{S_ROLE}, s2, 7
s_lshr_b32 s{S_HEAD}, s2, 3
s_barrier
s_branch L_restart
L_ticket:
s_barrier
v_mov_b32 v2, 0
s_cmp_lg_u32 s{S_WAVE}, 0
s_cbranch_scc1 L_ticket2
s_lshl_b32 s64, s{S_XCC}, 2
s_add_u32 s64, s64, 64
v_mov_b32 v1, 1
s_mov_b64 exec, 1
buffer_atomic_add v1, v2, {DBG}, s64 offen sc0
s_waitcnt vmcnt(0)
ds_write_b32 v2, v1
s_waitcnt lgkmcnt(0)
s_mov_b64 exec, -1
L_ticket2:
s_barrier
ds_read_b32 v1, v2
s_waitcnt lgkmcnt(0)
v_and_b32 v1, 31, v1
v_readfirstlane_b32 s{S_HEAD}, v1
s_barrier
s_branch L_restart
L_abort:
s_endpgm''')

OPT = dict(prof=False)
def stamp(a, idx, vt):
    if not OPT['prof']: return
    L = a.uniq('L_st')
    a(f'''s_cmp_lg_u32 s{S_WAVE}, 0
s_cbranch_scc1 {L}
s_memrealtime s[100:101]
s_waitcnt lgkmcnt(0)
v_mov_b32 v{vt}, s100
s_lshl_b32 s100, s{S_ROLE}, 5
s_add_u32 s100, s100, s{S_HEAD}
s_lshl_b32 s100, s100, 8
s_add_u32 s100, s100, {PROF + 4*idx}
v_mov_b32 v{vt+1}, 0
s_mov_b64 exec, 1
buffer_store_dword v{vt}, v{vt+1}, {WS}, s100 offen
s_mov_b64 exec, -1
{L}:''')
```

```python
from common import *

HCS = 4160
HW_ = 8 * HCS
UB = 4 * HW_
US = 7680

def conv(a):
    sD0, sT, sT2 = 67, 68, 69
    srd(a, R0, P_AK, NB); srd(a, R1, P_AV, NB); srd(a, R2, P_SSMK, NB)
    a(f'''s_lshl_b32 s{sD0}, s66, 2
s_lshl_b32 s{sT}, s66, 5
s_add_u32 s70, s{P_SH}, s{sT}
s_addc_u32 s71, s{P_SH+1}, 0
s_load_dwordx8 s[72:79], s[70:71], 0
s_lshl_b32 s{sT}, s66, 3
s_add_u32 s70, s{P_SSMD}, s{sT}
s_addc_u32 s71, s{P_SSMD+1}, 0
s_load_dwordx2 s[98:99], s[70:71], 0''')
    a(f'''s_lshl_b32 s{sT}, s{S_WAVE}, 6
v_add_u32 v1, s{sT}, v0
v_mul_u32_u24 v2, {8*1152}, v1
s_lshl_b32 s{sT}, s66, 3
v_add_u32 v2, s{sT}, v2
v_subrev_u32 v3, {3*1152}, v2
v_cmp_eq_u32 vcc, 0, v1
v_mov_b32 v8, 0x7ff00000
v_cndmask_b32 v3, v3, v8, vcc
s_mov_b32 s{sT2}, 4608''')
    KR, VR = 16, 40
    for r in range(3): a(f'buffer_load_dwordx2 {vr(KR+2*r,2)}, v3, s[{R0}:{R0+3}], 0 offen offset:{1152*r}')
    for r in range(8): a(f'buffer_load_dwordx2 {vr(KR+6+2*r,2)}, v2, s[{R0}:{R0+3}], {"0" if r<4 else "s%d"%sT2} offen offset:{1152*(r%4)}')
    for r in range(8): a(f'buffer_load_dwordx2 {vr(VR+2*r,2)}, v2, s[{R1}:{R1+3}], {"0" if r<4 else "s%d"%sT2} offen offset:{1152*(r%4)}')
    a(f'''s_add_u32 s{sT}, s{sD0}, s{S_WAVE}
s_lshl_b32 s{sT}, s{sT}, 12
v_lshrrev_b32 v4, 3, v0
v_and_b32 v5, 7, v0
v_add_u32 v6, v4, v5
v_subrev_u32 v6, 7, v6
v_lshlrev_b32 v7, 1, v6
v_cmp_gt_i32 vcc, 0, v6
v_cndmask_b32 v7, v7, v8, vcc
buffer_load_ushort v9, v7, s[{R2}:{R2+3}], s{sT} offen''')
    a(f'''v_lshlrev_b32 v10, 4, v0
s_mul_i32 s70, s{S_WAVE}, {HW_}
s_add_u32 s70, s70, 64
s_add_u32 s71, s{sT}, {64-62}''')
    for c in range(8):
        a(f's_mov_b32 m0, s70')
        for i in range(4): a(f'buffer_load_dwordx4 v10, s[{R2}:{R2+3}], s71 offen offset:{1024*i} lds')
        if c < 7: a(f's_add_u32 s70, s70, {HCS}\ns_add_u32 s71, s71, 2')
    stamp(a, 7, 140)
    register(a, 52, 12)
    stamp(a, 8, 140)
    a(f'''v_mov_b32 v12, 0
v_mov_b32 v13, 0
v_mov_b32 v14, 0
v_mov_b32 v15, 0
s_mul_i32 s70, s{S_WAVE}, {HW_}
v_lshrrev_b32 v11, 2, v0
v_and_b32 v11, 7, v11
v_mul_u32_u24 v11, {HCS}, v11
v_and_b32 v56, 3, v0
v_lshl_add_u32 v11, v56, 4, v11
v_add_u32 v11, s70, v11
ds_write_b128 v11, v[12:15]
v_lshrrev_b32 v57, 2, v0
v_mul_u32_u24 v57, 80, v57
v_lshl_add_u32 v57, v56, 4, v57
s_mul_i32 s71, s{S_WAVE}, {US}
s_add_u32 s71, s71, {UB + 64*80}
v_add_u32 v57, s71, v57
ds_write_b128 v57, v[12:15]
ds_write_b128 v57, v[12:15] offset:{16*80}
v_mul_u32_u24 v11, {HCS}, v4
v_lshl_add_u32 v11, v5, 1, v11
v_add_u32 v11, s70, v11
s_waitcnt lgkmcnt(0)''')
    for ch in range(4):
        for j in range(4):
            src = 72 + 2*ch + j//2
            a(f's_lshl_b32 s{80+4*ch+j}, s{src}, 16' if j % 2 == 0 else f's_and_b32 s{80+4*ch+j}, s{src}, 0xffff0000')
    a(f'''s_cmp_lt_u32 s{S_WAVE}, 2
s_cselect_b32 s96, s98, s99
s_bitcmp1_b32 s{S_WAVE}, 0
s_cselect_b32 s97, 0, 16
s_lshl_b32 s96, s96, s97
s_and_b32 s96, s96, 0xffff0000
s_waitcnt vmcnt(32)
ds_write_b16 v11, v9 offset:48''')
    stamp(a, 9, 140)
    KF, O = 64, 80
    a(f'''v_sub_u32 v58, 255, v1
v_lshrrev_b32 v59, 2, v58
v_mul_u32_u24 v59, 80, v59
v_and_b32 v58, 3, v58
v_lshl_add_u32 v59, v58, 4, v59
v_add_u32 v59, {UB}, v59''')
    for ch in range(4):
        un = (lambda d, s: f'v_lshlrev_b32 v{d}, 16, v{s}') if ch % 2 == 0 else (lambda d, s: f'v_and_b32 v{d}, 0xffff0000, v{s}')
        for r in range(11): a(un(KF + r, KR + 2*r + ch//2))
        for r in range(8):
            a(f'v_mul_f32 v{O+r}, s{80+4*ch+3}, v{KF+r}')
        for j in (2, 1, 0):
            for r in range(8): a(f'v_fmac_f32 v{O+r}, s{80+4*ch+j}, v{KF+r+3-j}')
        for r in range(8): a(un(KF + r, VR + 2*r + ch//2))
        for r in range(8): a(f'v_mul_f32 v{O+r}, v{O+r}, v{KF+r}')
        P = 88 + 4*ch
        for q in range(4): a(f'v_cvt_pk_bf16_f32 v{P+q}, v{O+7-2*q}, v{O+6-2*q}')
        a(f'ds_write_b128 v59, {vr(P,4)} offset:{ch*US}')
    stamp(a, 10, 140)
    a(f'''v_and_b32 v1, 31, v0
v_lshrrev_b32 v2, 5, v0
v_and_b32 v3, 7, v0
v_mul_u32_u24 v3, {HCS}, v3
v_lshrrev_b32 v4, 3, v1
v_add_u32 v4, v4, v2
v_lshl_add_u32 v3, v4, 4, v3
v_add_u32 v3, s70, v3
v_sub_u32 v4, 31, v1
v_mul_u32_u24 v4, 80, v4
v_lshl_add_u32 v5, v2, 4, v4
s_mul_i32 s71, s{S_WAVE}, {US}
s_add_u32 s71, s71, {UB}
v_add_u32 v5, s71, v5
s_waitcnt vmcnt(0) lgkmcnt(0)
s_barrier''')
    stamp(a, 11, 140)
    BUF = 64; DEP = 3
    boff = lambda q: (q >> 1) * 80 + (q & 1) * 32
    def rd(q):
        b = BUF + 16 * (q % DEP)
        a(f'ds_read_b128 {vr(b,4)}, v3 offset:{32*q}')
        a(f'ds_read_b128 {vr(b+4,4)}, v5 offset:{boff(q+64)}')
        a(f'ds_read_b128 {vr(b+8,4)}, v5 offset:{boff(q)}')
        a(f'ds_read_b128 {vr(b+12,4)}, v3 offset:{32*(q+64)}')
    for q in range(DEP - 1): rd(q)
    for q in range(64):
        if q + DEP - 1 < 64: rd(q + DEP - 1)
        a(f's_waitcnt lgkmcnt({4*min(DEP-1, 63-q)})')
        b = BUF + 16 * (q % DEP)
        c = (lambda r: vr(r, 16)) if q else (lambda r: '0')
        a(f'v_mfma_f32_32x32x16_bf16 v[16:31], {vr(b,4)}, {vr(b+4,4)}, {c(16)}')
        a(f'v_mfma_f32_32x32x16_bf16 v[32:47], {vr(b,4)}, {vr(b+8,4)}, {c(32)}')
        a(f'v_mfma_f32_32x32x16_bf16 v[48:63], {vr(b+12,4)}, {vr(b+4,4)}, {c(48)}')
    stamp(a, 12, 140)
    a(f'''v_sub_u32 v6, 1, v2
v_lshl_add_u32 v6, v6, 3, v4
v_add_u32 v6, s71, v6''')
    KVR = 112
    for tile in range(2):
        for rho in range(4):
            a(f'ds_read_b64 {vr(KVR+8*tile+2*rho,2)}, v6 offset:{(1-tile)*32*80 + (3-rho)*16}')
    a(f'''v_mul_u32_u24 v7, 36864, v1
v_lshl_add_u32 v7, v2, 4, v7
s_add_u32 s{sT}, s{sD0}, s{S_WAVE}
s_lshl_b32 s{sT}, s{sT}, 6
s_add_u32 s{sT}, s{sT}, {YT}
s_add_u32 s{sT2}, s{sT}, {32*36864}''')
    for r in range(16): a(f'v_add_f32 v{32+r}, v{32+r}, v{48+r}')
    a('s_waitcnt lgkmcnt(0)')
    for tile in range(2):
        A = 16 + 16 * tile
        for rho in range(4):
            k = KVR + 8*tile + 2*rho
            a(f'''v_and_b32 v8, 0xffff0000, v{k+1}
v_lshlrev_b32 v9, 16, v{k+1}
v_and_b32 v10, 0xffff0000, v{k}
v_lshlrev_b32 v11, 16, v{k}
v_fmac_f32 v{A+4*rho}, s96, v8
v_fmac_f32 v{A+4*rho+1}, s96, v9
v_fmac_f32 v{A+4*rho+2}, s96, v10
v_fmac_f32 v{A+4*rho+3}, s96, v11
v_cvt_pk_bf16_f32 v{128+8*tile+2*rho}, v{A+4*rho}, v{A+4*rho+1}
v_cvt_pk_bf16_f32 v{128+8*tile+2*rho+1}, v{A+4*rho+2}, v{A+4*rho+3}''')
        for pr in range(2):
            b = 128 + 8*tile + 4*pr
            a(f'''v_permlane32_swap_b32 v{b}, v{b+2}
v_permlane32_swap_b32 v{b+1}, v{b+3}
buffer_store_dwordx4 {vr(b,4)}, v7, {WS}, s{sT if tile==0 else sT2} offen offset:{32*pr} sc1''')
    stamp(a, 13, 150)
    if OPT['prof']: a('s_waitcnt vmcnt(0)')
    stamp(a, 14, 150)
    census(a, 12)
    L = a.uniq('L_cf')
    a(f'''s_barrier
s_cmp_lg_u32 s{S_WAVE}, 0
s_cbranch_scc1 {L}
s_lshl_b32 s{sT}, s66, 2
v_mov_b32 v1, {CF}
v_mov_b32 v2, 1
s_mov_b64 exec, 1
buffer_store_dword v2, v1, {WS}, s{sT} offen sc1
s_mov_b64 exec, -1
{L}:''')

def red8(a, v):
    a(f'''v_add_f32_dpp v{v}, v{v}, v{v} quad_perm:[1,0,3,2] row_mask:0xf bank_mask:0xf
v_add_f32_dpp v{v}, v{v}, v{v} quad_perm:[2,3,0,1] row_mask:0xf bank_mask:0xf
v_add_f32_dpp v{v}, v{v}, v{v} row_half_mirror row_mask:0xf bank_mask:0xf''')

def rbf(a, v):
    a(f'v_cvt_pk_bf16_f32 v{v}, v{v}, v{v}\nv_and_b32 v{v}, 0xffff0000, v{v}')

def stageb(a):
    srd(a, R0, P_AQ, NB)
    XP, YP, F, C = 16, 52, 88, 160
    a(f'''v_lshrrev_b32 v1, 3, v0
v_and_b32 v2, 7, v0
v_mul_u32_u24 v3, 1152, v1
v_lshl_add_u32 v3, v2, 4, v3
s_lshl_b32 s67, s66, 5
s_lshl_b32 s68, s{S_WAVE}, 3
s_add_u32 s67, s67, s68
s_mul_i32 s68, s67, 1152''')
    for i in range(9): a(f'buffer_load_dwordx4 {vr(XP+4*i,4)}, v3, s[{R0}:{R0+3}], s68 offen offset:{128*i}')
    a(f'''v_min_u32 v4, 35, v0
v_lshlrev_b32 v4, 4, v4''')
    poll(a, f'buffer_load_dwordx4 v[8:11], v4, {WS}, 0 offen offset:{CF} sc1',
         'v_min_u32 v8, v8, v9\nv_min3_u32 v8, v8, v10, v11\nv_cmp_eq_u32 vcc, 0, v8', sleep=4)
    stamp(a, 15, 240)
    a(f'''s_barrier
v_lshlrev_b32 v5, 4, v0
s_mul_i32 s69, s66, 36864
s_mul_i32 s70, s{S_WAVE}, 9216
s_add_u32 s69, s69, s70
s_add_u32 s69, s69, {YT}''')
    for i in range(9):
        if i % 4 == 0: a(f's_add_u32 m0, s70, {1024*i}' if i else 's_mov_b32 m0, s70')
        a(f'buffer_load_dwordx4 v5, {WS}, s69 offen offset:{1024*(i%4)} sc1 lds')
        if i % 4 == 3: a('s_add_u32 s69, s69, 4096')
    a(f'''v_lshrrev_b32 v6, 4, v0
v_lshlrev_b32 v6, 1, v6
v_bfe_u32 v7, v0, 1, 1
v_add_u32 v6, v6, v7
v_lshlrev_b32 v6, 3, v6
v_bfe_u32 v7, v0, 2, 2
v_add_u32 v6, v6, v7
v_lshlrev_b32 v6, 6, v6
v_and_b32 v7, 1, v0
v_lshl_add_u32 v6, v7, 3, v6
s_lshl_b32 s71, s{S_WAVE}, 4
v_add_u32 v6, s71, v6
v_lshl_add_u32 v7, v2, 3, v1
v_lshlrev_b32 v7, 4, v7
s_add_u32 s70, s70, 36864
v_add_u32 v7, s70, v7
v_add_u32 v5, s70, v5
s_waitcnt vmcnt(0)
s_barrier''')
    stamp(a, 16, 240)
    for i in range(9):
        a(f'ds_read_b64_tr_b16 {vr(YP+4*i,2)}, v6 offset:{4096*i}')
        a(f'ds_read_b64_tr_b16 {vr(YP+4*i+2,2)}, v6 offset:{4096*i+256}')
        if i == 5: a('s_waitcnt lgkmcnt(6)')
    for p in range(36): a(f'v_lshlrev_b32 v{F+2*p}, 16, v{XP+p}\nv_and_b32 v{F+2*p+1}, 0xffff0000, v{XP+p}')
    a('s_waitcnt lgkmcnt(0)')
    for i in range(9): a(f'ds_write_b128 v7, {vr(YP+4*i,4)} offset:{1024*i}')
    def stats(mean, var):
        a(f'v_pk_add_f32 v[8:9], {vr(F,2)}, {vr(F+2,2)}\nv_pk_add_f32 v[10:11], {vr(F+4,2)}, {vr(F+6,2)}')
        for p in range(4, 36): a(f'v_pk_add_f32 {vr(8+2*(p%2),2)}, {vr(8+2*(p%2),2)}, {vr(F+2*p,2)}')
        a('v_pk_add_f32 v[8:9], v[8:9], v[10:11]\nv_add_f32 v8, v8, v9'); red8(a, 8)
        a(f'v_mul_f32 v{mean}, {-1.0/576:.10e}, v8\nv_mov_b32 v{mean+1}, v{mean}')
        for p in range(36): a(f'v_pk_add_f32 {vr(C+2*p,2)}, {vr(F+2*p,2)}, {vr(mean,2)}')
        a(f'v_pk_mul_f32 v[8:9], {vr(C,2)}, {vr(C,2)}\nv_pk_mul_f32 v[10:11], {vr(C+2,2)}, {vr(C+2,2)}')
        for p in range(2, 36): a(f'v_pk_fma_f32 {vr(8+2*(p%2),2)}, {vr(C+2*p,2)}, {vr(C+2*p,2)}, {vr(8+2*(p%2),2)}')
        a('v_pk_add_f32 v[8:9], v[8:9], v[10:11]\nv_add_f32 v8, v8, v9'); red8(a, 8)
        a(f'v_mul_f32 v{var}, {1.0/576:.10e}, v8')
    a('s_waitcnt lgkmcnt(0)')
    for i in range(9): a(f'ds_read_b128 {vr(YP+4*i,4)}, v5 offset:{1024*i}')
    stats(12, 14)
    a('v_add_f32 v14, 0x3727c5ac, v14\nv_rsq_f32 v14, v14\nv_mov_b32 v15, v14')
    a(f's_add_u32 s69, s68, {YR}\ns_add_u32 s70, s68, {X1}\ns_add_u32 s71, s68, {H1}\ns_waitcnt lgkmcnt(0)')
    for i in range(9): a(f'buffer_store_dwordx4 {vr(YP+4*i,4)}, v3, {WS}, s69 offen offset:{128*i} sc1')
    for p in range(36):
        a(f'''v_lshlrev_b32 v8, 16, v{YP+p}
v_and_b32 v9, 0xffff0000, v{YP+p}
v_pk_mul_f32 {vr(C+2*p,2)}, {vr(C+2*p,2)}, v[14:15]
v_pk_fma_f32 {vr(F+2*p,2)}, {vr(C+2*p,2)}, v[8:9], {vr(F+2*p,2)}
v_cvt_pk_bf16_f32 v{XP+p}, v{F+2*p}, v{F+2*p+1}
v_lshlrev_b32 v{F+2*p}, 16, v{XP+p}
v_and_b32 v{F+2*p+1}, 0xffff0000, v{XP+p}''')
        if p % 4 == 3: a(f'buffer_store_dwordx4 {vr(XP+p-3,4)}, v3, {WS}, s70 offen offset:{128*(p//4)} sc1')
    stats(12, 14)
    rbf(a, 12); a('v_mov_b32 v13, v12')
    rbf(a, 14); a('v_add_f32 v14, 0x3727c5ac, v14'); rbf(a, 14); a('v_sqrt_f32 v14, v14'); rbf(a, 14)
    a('v_rcp_f32 v14, v14\nv_mov_b32 v15, v14')
    for p in range(36):
        a(f'''v_pk_add_f32 v[8:9], {vr(F+2*p,2)}, v[12:13]
v_cvt_pk_bf16_f32 v10, v8, v9
v_lshlrev_b32 v8, 16, v10
v_and_b32 v9, 0xffff0000, v10
v_pk_mul_f32 v[8:9], v[8:9], v[14:15]
v_cvt_pk_bf16_f32 v{C+p}, v8, v9''')
        if p % 4 == 3: a(f'buffer_store_dwordx4 {vr(C+p-3,4)}, v3, {WS}, s71 offen offset:{128*(p//4)} sc1')
    stamp(a, 17, 240)
    a(f'''s_lshl_b32 s67, s67, 2
s_add_u32 s67, s67, {HF}
v_lshlrev_b32 v1, 4, v0
v_mov_b32 v4, 1
v_mov_b32 v5, 1
v_mov_b32 v6, 1
v_mov_b32 v7, 1
s_waitcnt vmcnt(0)
s_mov_b64 exec, 3
buffer_store_dwordx4 v[4:7], v1, {WS}, s67 offen sc1
s_mov_b64 exec, -1''')
```

```python
from common import *
def run_chunks(a, chunks, nslots, s_stage, hook=None, s_t=63):
    n = len(chunks); issued = 0
    free = list(range(nslots)); slot_of = {}
    def can(j):
        s = chunks[j].get('slot')
        return (s in free) if s is not None else any(x not in reserved(j) for x in free) or bool(free and not reserved(j))
    def reserved(j): return set()
    def issue(j):
        c = chunks[j]; s = c.get('slot')
        if s is None: s = free[0]
        free.remove(s); slot_of[j] = s
        for i in range(4):
            a(f's_add_u32 m0, s{s_stage}, {s*4096 + i*1024}')
            a(f's_add_u32 s{s_t}, s{c["sbase"]}, {c["consts"][i]}')
            a(f'buffer_load_dwordx4 v{c["voff"]}, {c["srd"]}, s{s_t} offen lds')
    def fill():
        nonlocal issued
        while issued < n and free and (chunks[issued].get('slot') is None or chunks[issued]['slot'] in free):
            issue(issued); issued += 1
    fill()
    if hook: hook(4 * issued)
    for j in range(n):
        assert j < issued
        a(f's_waitcnt vmcnt({4*(issued-j-1)})')
        c = chunks[j]; s = slot_of[j]
        for dst, addr, imm in c['reads']: a(f'ds_read_b64_tr_b16 {dst}, v{addr} offset:{s*4096+imm}')
        a('s_waitcnt lgkmcnt(0)')
        if c.get('post'): c['post'](s)
        else: free.append(s)
        fill()

def addr_regs(a, s_stage, vb):
    a(f'''v_lshrrev_b32 v{vb}, 2, v0
v_lshlrev_b32 v{vb}, 13, v{vb}
v_and_b32 v{vb+5}, 3, v0
v_lshl_add_u32 v{vb}, v{vb+5}, 4, v{vb}
v_lshrrev_b32 v{vb+1}, 3, v0
v_mul_u32_u24 v{vb+1}, 1152, v{vb+1}
v_and_b32 v{vb+3}, 7, v0
v_lshl_add_u32 v{vb+1}, v{vb+3}, 4, v{vb+1}
v_lshrrev_b32 v{vb+2}, 1, v0
v_mul_u32_u24 v{vb+2}, 1152, v{vb+2}
v_and_b32 v{vb+3}, 1, v0
v_lshl_add_u32 v{vb+2}, v{vb+3}, 4, v{vb+2}
v_lshrrev_b32 v{vb+3}, 4, v0
v_bfe_u32 v{vb+4}, v0, 2, 2''')

def pair(frag, pp):
    return vr(frag[1] + 2 * pp, 2, frag[0])
```

```python
from common import *
from wload import *
from prologue import rbf

def wfrag(i):
    return ('a', 4 * i) if i < 64 else ('v', 224 + 4 * (i - 64))
def fr(f, n=4): return vr(f[1], n, f[0])

S_LAYER, S_SEG, S_BUF, S_PEND, S_HAVE, S_STG = 66, 67, 68, 69, 70, 71
VX, VA0, VA1, VL16, VFL = 1, 2, 3, 4, 5

def load_qkv_nat(chunks, srd_, sbase, fragbase, vq, vaddr):
    for t in range(9):
        reads = []
        for hf in range(2):
            for ph in range(2):
                for sec in range(2):
                    reads.append((pair(wfrag(fragbase + (2*t+hf)*2 + ph), sec), vaddr, hf*2048 + sec*256 + ph*32))
        chunks.append(dict(srd=srd_, voff=vq, sbase=sbase, consts=[(64*t+16*i)*8192 for i in range(4)], reads=reads))

def worker_setup(a):
    a(f'''s_lshr_b32 s{S_LAYER}, s{S_ROLE}, 2
s_mul_i32 s{S_STG}, s{S_WAVE}, 40960
v_lshlrev_b32 v{VL16}, 4, v0
v_lshrrev_b32 v8, 3, v0
v_mul_u32_u24 v{VX}, 1152, v8
v_lshrrev_b32 v8, 4, v0
s_lshl_b32 s63, s{S_WAVE}, 2
v_add_u32 v9, s63, v8
v_xor_b32 v9, v9, v0
v_and_b32 v9, 7, v9
v_lshl_add_u32 v{VX}, v9, 4, v{VX}
v_bfe_u32 v9, v0, 3, 1
v_mul_u32_u24 v{VA0}, 9216, v9
v_and_b32 v9, 7, v0
v_lshl_add_u32 v{VA0}, v9, 7, v{VA0}
v_lshlrev_b32 v{VFL}, 2, v9
v_bfe_u32 v9, v0, 1, 3
v_xor_b32 v9, v9, v8
v_lshl_add_u32 v{VA0}, v9, 4, v{VA0}
v_xor_b32 v{VA1}, 64, v{VA0}''')

def reg_hook(a):
    def hook(younger):
        L = a.uniq('L_nr')
        a(f's_cmp_ge_u32 s{S_ROLE}, 3\ns_cbranch_scc1 {L}')
        register(a, younger, 20)
        a(f'{L}:')
    return hook

def hf_off(a, sd, sseg):
    a(f'''s_lshl_b32 s{sd}, s{S_LAYER}, 6
s_add_u32 s{sd}, s{sd}, s{sseg}
s_lshl_b32 s{sd}, s{sd}, 2
s_add_u32 s{sd}, s{sd}, s{S_WAVE}
s_lshl_b32 s{sd}, s{sd}, 5
s_add_u32 s{sd}, s{sd}, {HF}''')

def xdma(a, sseg, sbuf):
    a(f'''s_mul_i32 s63, s{S_LAYER}, {LSTR}
s_mul_i32 s64, s{sseg}, 36864
s_add_u32 s63, s63, s64
s_mul_i32 s64, s{S_WAVE}, 9216
s_add_u32 s63, s63, s64
s_add_u32 s63, s63, {H1}
s_add_u32 s64, s64, s{sbuf}''')
    for i in range(9):
        a(f's_add_u32 m0, s64, {896*i}')
        a(f'buffer_load_dwordx4 v{VX}, {WS}, s63 offen offset:{128*i} sc1 lds')

def hf_poll(a, sseg, vt):
    hf_off(a, 65, sseg)
    poll(a, f'buffer_load_dword v{vt}, v{VFL}, {WS}, s65 offen sc1', f'v_cmp_eq_u32 vcc, 0, v{vt}', sleep=2)

def flush(a, vt):
    L = a.uniq('L_fl')
    a(f'''s_cmp_eq_u32 s{S_PEND}, 0
s_cbranch_scc1 {L}
v_mov_b32 v{vt}, 1
v_mov_b32 v{vt+1}, 0
s_waitcnt vmcnt(0)
s_mov_b64 exec, 1
buffer_store_dword v{vt}, v{vt+1}, {WS}, s{S_PEND} offen sc1
s_mov_b64 exec, -1
s_mov_b32 s{S_PEND}, 0
{L}:''')

def task_index(a, sd, sseg):
    a(f'''s_lshl_b32 s{sd}, s{S_LAYER}, 6
s_add_u32 s{sd}, s{sd}, s{sseg}
s_lshl_b32 s{sd}, s{sd}, 5
s_add_u32 s{sd}, s{sd}, s{S_HEAD}
s_lshl_b32 s{sd}, s{sd}, 2
s_add_u32 s{sd}, s{sd}, s{S_WAVE}''')

def kv_role(a):
    worker_setup(a)
    srd(a, R0, P_WK, WB); srd(a, R1, P_WV, WB)
    addr_regs(a, S_STG, 10)
    a(f'''v_lshl_add_u32 v16, v13, 3, v14
v_lshlrev_b32 v16, 6, v16
v_lshl_add_u32 v16, v15, 3, v16
v_add_u32 v16, s{S_STG}, v16
s_lshl_b32 s72, s{S_HEAD}, 8
s_lshl_b32 s73, s{S_WAVE}, 6
s_add_u32 s72, s72, s73
s_barrier''')
    ch = []
    load_qkv_nat(ch, f's[{R0}:{R0+3}]', 72, 0, 10, 16)
    load_qkv_nat(ch, f's[{R1}:{R1+3}]', 72, 36, 10, 16)
    run_chunks(a, ch, 10, S_STG, hook=reg_hook(a))
    stamp(a, 3, 20)
    census(a, 20)
    stamp(a, 4, 20)
    a(f'''s_barrier
s_mov_b32 s{S_SEG}, 0
s_mov_b32 s{S_BUF}, 0
s_mov_b32 s{S_PEND}, 0''')
    hf_poll(a, S_SEG, 8)
    xdma(a, S_SEG, S_BUF)
    a('s_waitcnt vmcnt(0)')
    stamp(a, 5, 20)
    XB, KA, VA, PK = 16, 48, 64, 80
    a(f'''L_kv_loop:
s_barrier
s_add_u32 s74, s{S_SEG}, 1
s_min_u32 s74, s74, 63
s_sub_u32 s75, 36864, s{S_BUF}
s_mov_b32 s{S_HAVE}, 0''')
    hf_off(a, 76, 74)
    DEP = 4
    def rd(ks):
        b = XB + 8 * (ks % DEP)
        for tau in range(2): a(f'ds_read_b128 {vr(b+4*tau,4)}, v{VA1 if ks&1 else VA0} offset:{tau*18432 + (ks>>1)*1024}')
    for ks in range(DEP - 1): rd(ks)
    for ks in range(18):
        if ks + DEP - 1 < 18: rd(ks + DEP - 1)
        if ks == 4: a(f'buffer_load_dword v8, v{VFL}, {WS}, s76 offen sc1')
        if ks == 9:
            a('s_waitcnt vmcnt(0)\nv_cmp_eq_u32 vcc, 0, v8')
            flush(a, 10)
            L = a.uniq('L_nx')
            a(f's_cbranch_vccnz {L}')
            xdma(a, 74, 75)
            a(f's_mov_b32 s{S_HAVE}, 1\n{L}:')
        a(f's_waitcnt lgkmcnt({2*min(DEP-1, 17-ks)})')
        b = XB + 8 * (ks % DEP)
        for tau in range(2):
            for ph in range(2):
                d = KA + 4 * (2*tau + ph)
                a(f'v_mfma_f32_16x16x32_bf16 {vr(d,4)}, {fr(wfrag(ks*2+ph))}, {vr(b+4*tau,4)}, {vr(d,4) if ks else 0}')
            for ph in range(2):
                d = VA + 4 * (2*ph + tau)
                a(f'v_mfma_f32_16x16x32_bf16 {vr(d,4)}, {vr(b+4*tau,4)}, {fr(wfrag(36+ks*2+ph))}, {vr(d,4) if ks else 0}')
    task_index(a, 77, S_SEG)
    a(f'''s_lshl_b32 s78, s77, 12
s_add_u32 s78, s78, {KV}
s_lshl_b32 s{S_PEND}, s77, 2
s_add_u32 s{S_PEND}, s{S_PEND}, {KVF}
s_sub_u32 s79, s75, s{S_BUF}
v_add_u32 v{VA0}, s79, v{VA0}
v_add_u32 v{VA1}, s79, v{VA1}''')
    for f in range(4):
        for q in range(4): a(f'v_cvt_pk_bf16_f32 v{PK+4*f+q}, v{KA+8*f+2*q}, v{KA+8*f+2*q+1}')
        a(f'buffer_store_dwordx4 {vr(PK+4*f,4)}, v{VL16}, {WS}, s78 offen offset:{1024*f} sc1')
    a(f'''s_cmp_eq_u32 s{S_SEG}, 63
s_cbranch_scc1 L_kv_done
s_mov_b32 s{S_SEG}, s74
s_mov_b32 s{S_BUF}, s75
s_waitcnt vmcnt(4)
s_cmp_eq_u32 s{S_HAVE}, 1
s_cbranch_scc1 L_kv_loop''')
    flush(a, 10)
    hf_poll(a, S_SEG, 8)
    xdma(a, S_SEG, S_BUF)
    a('s_waitcnt vmcnt(0)\ns_branch L_kv_loop\nL_kv_done:')
    flush(a, 10)
    stamp(a, 6, 20)
    a('s_endpgm')

QXO, OXO, ROWO, EXO, BNO = 0, 8192, 16384, 18432, 19456
HB = 73728
VLH, VPS, VPX, VR_, VRX, VRW, VEW, VL2, VZ = 6, 7, 8, 9, 10, 11, 12, 13, 14
BIAS, ONES, QSEL = 16, 24, 28
S_QP, S_IDX, S_ROW, S_C2 = 80, 81, 82, 83

def red64(a, v, t):
    a(f'''v_add_f32_dpp v{v}, v{v}, v{v} quad_perm:[1,0,3,2] row_mask:0xf bank_mask:0xf
v_add_f32_dpp v{v}, v{v}, v{v} quad_perm:[2,3,0,1] row_mask:0xf bank_mask:0xf
v_add_f32_dpp v{v}, v{v}, v{v} row_half_mirror row_mask:0xf bank_mask:0xf
v_add_f32_dpp v{v}, v{v}, v{v} row_mirror row_mask:0xf bank_mask:0xf
v_mov_b32 v{t}, v{v}
v_permlane16_swap_b32 v{v}, v{t}
v_add_f32 v{v}, v{v}, v{t}
v_mov_b32 v{t}, v{v}
v_permlane32_swap_b32 v{v}, v{t}
v_add_f32 v{v}, v{v}, v{t}''')

def qo_role(a):
    worker_setup(a)
    srd(a, R0, P_WQ, WB); srd(a, R1, P_WO, WB); srd(a, R2, P_OUT, NB)
    addr_regs(a, S_STG, 30)
    a(f'''v_lshl_add_u32 v36, v33, 3, v34
v_lshlrev_b32 v36, 6, v36
v_lshl_add_u32 v36, v35, 3, v36
v_add_u32 v36, s{S_STG}, v36
v_lshl_add_u32 v37, v33, 2, v34
v_lshlrev_b32 v38, 5, v37
v_lshl_add_u32 v38, v35, 3, v38
v_add_u32 v38, s{S_STG}, v38
v_lshlrev_b32 v37, 7, v37
v_lshl_add_u32 v37, v35, 4, v37
v_add_u32 v37, s{S_STG}, v37
s_lshl_b32 s72, s{S_HEAD}, 8
s_lshl_b32 s73, s{S_WAVE}, 6
s_add_u32 s72, s72, s73
s_mul_i32 s73, s{S_HEAD}, 147456
s_lshl_b32 s74, s{S_WAVE}, 5
s_add_u32 s74, s74, s73
s_lshl_b32 s75, s{S_WAVE}, 8
s_add_u32 s73, s73, s75
s_barrier''')
    ch = []
    load_qkv_nat(ch, f's[{R0}:{R0+3}]', 72, 0, 30, 36)
    for kp in range(4):
        for Q in range(2):
            reads = [(pair(wfrag(36 + ((2*Q+p)*2+ph)*4 + kp), sec), 37, sec*2048 + p*64 + ph*8) for p in range(2) for ph in range(2) for sec in range(2)]
            ch.append(dict(srd=f's[{R1}:{R1+3}]', voff=31, sbase=73, consts=[(32*kp+8*i)*1152 + 128*Q for i in range(4)], reads=reads))
    reads = [(pair(wfrag(68 + kp), sec), 38, kp*1024 + sec*512) for kp in range(4) for sec in range(2)]
    ch.append(dict(srd=f's[{R1}:{R1+3}]', voff=32, sbase=74, consts=[32*i*1152 + 1024 for i in range(4)], reads=reads))
    run_chunks(a, ch, 10, S_STG, hook=reg_hook(a))
    stamp(a, 3, 20)
    census(a, 20)
    a(f'''v_and_b32 v40, 15, v0
v_add_u32 v{VLH}, {HB}, v{VL16}
v_mul_u32_u24 v{VPS}, 36864, v40
v_lshl_add_u32 v{VPX}, v33, 3, v{VPS}
v_lshl_add_u32 v{VPS}, v33, 4, v{VPS}
v_mul_u32_u24 v{VR_}, 1152, v33
v_lshl_add_u32 v{VR_}, v40, 4, v{VR_}
v_lshrrev_b32 v41, 3, v0
v_mul_u32_u24 v{VRX}, 1152, v41
v_and_b32 v41, 7, v0
v_lshl_add_u32 v{VRX}, v41, 4, v{VRX}
v_and_b32 v42, 1, v33
v_lshlrev_b32 v42, 4, v42
v_lshl_add_u32 v{VRW}, v40, 5, v42
s_lshl_b32 s63, s{S_WAVE}, 9
s_add_u32 s63, s63, {HB+ROWO}
v_add_u32 v{VRW}, s63, v{VRW}
v_lshl_add_u32 v{VEW}, v41, 5, v42
s_lshl_b32 s63, s{S_WAVE}, 8
s_add_u32 s63, s63, {HB+EXO}
v_add_u32 v{VEW}, s63, v{VEW}
v_lshlrev_b32 v{VL2}, 1, v0
v_mov_b32 v{VZ}, 0
s_and_b32 s63, s{S_WAVE}, 1
s_lshl_b32 s63, s63, 4
v_lshlrev_b32 v42, 2, v33
v_sub_u32 v42, v40, v42
v_add_u32 v42, s63, v42
v_mov_b32 v43, 0xf149f2ca
v_mov_b32 v44, 0x3f80
v_mov_b32 v45, 0x3f800000
v_and_b32 v46, 1, v0
v_cmp_eq_u32 vcc, 1, v46
v_cndmask_b32 v44, v44, v45, vcc
v_lshrrev_b32 v46, 1, v40
s_mov_b32 s{S_C2}, 0x3e0293ee''')
    for tk in range(2):
        for r in range(4): a(f'v_cmp_gt_i32 vcc, {16*tk+r}, v42\nv_cndmask_b32 v{BIAS+4*tk+r}, 0, v43, vcc')
    for k in range(4): a(f'v_mov_b32 v{ONES+k}, 0x3f803f80\nv_cmp_eq_u32 vcc, {k}, v46\nv_cndmask_b32 v{QSEL+k}, 0, v44, vcc')
    a(f'''s_and_b32 s{S_SEG}, s{S_ROLE}, 1
s_lshl_b32 s63, s{S_LAYER}, 1
s_add_u32 s63, s63, s{S_SEG}
s_mul_i32 s{S_QP}, s63, {QPSTR}
s_add_u32 s{S_QP}, s{S_QP}, {QP}
s_mov_b32 s{S_BUF}, 0
s_barrier''')
    hf_poll(a, S_SEG, 40)
    xdma(a, S_SEG, S_BUF)
    a('s_waitcnt vmcnt(0)')
    stamp(a, 5, 40)
    a(f's_cmp_lg_u32 s{S_SAFE}, 0\ns_cbranch_scc1 L_qo_safe')
    qo_loop(a, '', 'F')
    a('L_qo_safe:')
    qo_loop(a, 'sc1', 'S')

def qo_loop(a, st, tag):
    XB, QA, KF, VF, KMR, VMR, QFR = 32, 64, 80, 112, 128, 144, 148
    XR, YRr = 208, 214
    a(f'''L_qo_loop{tag}:
s_barrier
s_add_u32 s74, s{S_SEG}, 2
s_min_u32 s74, s74, 63
s_sub_u32 s75, 36864, s{S_BUF}
s_mov_b32 s{S_HAVE}, 0
s_lshl_b32 s{S_ROW}, s{S_SEG}, 5
s_add_u32 s{S_ROW}, s{S_ROW}, s{S_HEAD}
s_mul_i32 s76, s{S_ROW}, 1152
s_mul_i32 s77, s{S_LAYER}, {LSTR}
s_add_u32 s77, s77, s76
s_add_u32 s77, s77, {X1}
s_add_u32 s78, s76, {YR}
buffer_load_dwordx4 v[208:211], v{VL16}, {WS}, s77 offen sc1
buffer_load_ushort v212, v{VL2}, {WS}, s77 offen offset:1024 sc1
buffer_load_dwordx4 v[216:219], v{VL16}, {WS}, s78 offen sc1
buffer_load_ushort v220, v{VL2}, {WS}, s78 offen offset:1024 sc1
s_lshl_b32 s{S_IDX}, s{S_LAYER}, 11
s_add_u32 s{S_IDX}, s{S_IDX}, s{S_ROW}''')
    DEP = 4
    def rd(ks):
        b = XB + 8 * (ks % DEP)
        for tau in range(2): a(f'ds_read_b128 {vr(b+4*tau,4)}, v{VA1 if ks&1 else VA0} offset:{tau*18432 + (ks>>1)*1024}')
    for ks in range(DEP - 1): rd(ks)
    for ks in range(18):
        if ks + DEP - 1 < 18: rd(ks + DEP - 1)
        a(f's_waitcnt lgkmcnt({2*min(DEP-1, 17-ks)})')
        b = XB + 8 * (ks % DEP)
        for tau in range(2):
            for ph in range(2):
                d = QA + 4 * (2*tau + ph)
                a(f'v_mfma_f32_16x16x32_bf16 {vr(d,4)}, {fr(wfrag(ks*2+ph))}, {vr(b+4*tau,4)}, {vr(d,4) if ks else 0}')
    a(f'''s_sub_u32 s79, s75, s{S_BUF}
v_add_u32 v{VA0}, s79, v{VA0}
v_add_u32 v{VA1}, s79, v{VA1}
s_lshl_b32 s63, s{S_WAVE}, 10
v_add_u32 v40, s63, v{VLH}
s_lshl_b32 s76, s{S_IDX}, 4
s_add_u32 s77, s76, {KVF}
s_add_u32 s78, s76, {KMF}''')
    for tau in range(2):
        for q in range(4): a(f'v_cvt_pk_bf16_f32 v{XB+4*tau+q}, v{QA+8*tau+2*q}, v{QA+8*tau+2*q+1}')
        a(f'ds_write_b128 v40, {vr(XB+4*tau,4)} offset:{QXO+4096*tau}')
    chk4 = 'v_min_u32 v44, v44, v45\nv_min3_u32 v44, v44, v46, v47\nv_cmp_eq_u32 vcc, 0, v44'
    poll(a, f'buffer_load_dwordx4 v[44:47], v{VZ}, {WS}, s77 offen sc1', chk4, sleep=2)
    a(f'''s_lshl_b32 s76, s{S_IDX}, 14
s_add_u32 s76, s76, {KV}
s_lshr_b32 s79, s{S_WAVE}, 1
s_lshl_b32 s63, s79, 13
s_add_u32 s63, s63, s76''')
    for ks in range(4):
        for tk in range(2): a(f'buffer_load_dwordx4 {vr(KF+8*ks+4*tk,4)}, v{VL16}, {WS}, s76 offen offset:{1024*tk} sc1')
        if ks < 3: a('s_add_u32 s76, s76, 4096')
    for i in range(2):
        for ph in range(2): a(f'buffer_load_dwordx4 {vr(VF+8*i+4*ph,4)}, v{VL16}, {WS}, s63 offen offset:{2048+1024*ph} sc1')
        if i == 0: a('s_add_u32 s63, s63, 4096')
    a(f'''s_and_b32 s63, s{S_WAVE}, 1
s_lshl_b32 s63, s63, 12
v_add_u32 v41, s63, v{VLH}
s_waitcnt lgkmcnt(0)
s_barrier''')
    for ks in range(4): a(f'ds_read_b128 {vr(QFR+4*ks,4)}, v41 offset:{QXO+1024*ks}')
    poll(a, f'buffer_load_dwordx4 v[44:47], v{VZ}, {WS}, s78 offen sc1', chk4, sleep=1)
    a(f'''s_lshl_b32 s76, s{S_IDX}, 13
s_add_u32 s76, s76, {KM}
s_lshl_b32 s63, s79, 12
s_add_u32 s63, s63, s76
s_add_u32 s77, s76, 4096''')
    for ks in range(4): a(f'buffer_load_dwordx4 {vr(KMR+4*ks,4)}, v{VL16}, {WS}, s{76 if ks<2 else 77} offen offset:{2048*(ks&1)} sc1')
    for i in range(2): a(f'buffer_load_dwordx2 {vr(VMR+2*i,2)}, v{VL16}, {WS}, s63 offen offset:{2048*i+1024} sc1')
    hf_off(a, 76, 74)
    a(f'buffer_load_dword v42, v{VFL}, {WS}, s76 offen sc1\ns_waitcnt lgkmcnt(0)')
    S0 = 48
    for ks in range(4):
        for tk in range(2): a(f'v_mfma_f32_16x16x32_bf16 {vr(S0+4*tk,4)}, {vr(KF+8*ks+4*tk,4)}, {vr(QFR+4*ks,4)}, {vr(S0+4*tk,4) if ks else vr(BIAS+4*tk,4)}')
    a('s_waitcnt vmcnt(3)')
    for ks in range(4): a(f'v_mfma_f32_16x16x32_bf16 {vr(S0+8,4)}, {vr(KMR+4*ks,4)}, {vr(QFR+4*ks,4)}, {vr(S0+8,4) if ks else 0}')
    MX, T2 = 60, 61
    a(f'''v_max3_f32 v{MX}, v{S0}, v{S0+1}, v{S0+2}
v_max3_f32 v{T2}, v{S0+3}, v{S0+4}, v{S0+5}
v_max3_f32 v{MX}, v{MX}, v{S0+6}, v{S0+7}
v_max3_f32 v{T2}, v{T2}, v{S0+8}, v{S0+9}
v_max_f32 v{MX}, v{MX}, v{T2}
v_mov_b32 v{T2}, v{MX}
v_permlane16_swap_b32 v{MX}, v{T2}
v_max_f32 v{MX}, v{MX}, v{T2}
v_mov_b32 v{T2}, v{MX}
v_permlane32_swap_b32 v{MX}, v{T2}
v_max_f32 v{MX}, v{MX}, v{T2}
v_mul_f32 v{MX}, s{S_C2}, v{MX}''')
    for r in range(10): a(f'v_fma_f32 v{S0+r}, v{S0+r}, s{S_C2}, -v{MX}')
    for r in range(10): a(f'v_exp_f32 v{S0+r}, v{S0+r}')
    PX, PM, PV, SUM = 32, 36, 64, 44
    for q in range(4): a(f'v_cvt_pk_bf16_f32 v{PX+q}, v{S0+2*q}, v{S0+2*q+1}')
    a(f'''v_cvt_pk_bf16_f32 v{PM}, v{S0+8}, v{S0+9}
v_mov_b32 v{PM+1}, 0
v_mov_b32 v{PM+2}, 0
v_mov_b32 v{PM+3}, v{PM}
s_waitcnt vmcnt(0)
v_mfma_f32_16x16x32_bf16 {vr(SUM,4)}, {vr(ONES,4)}, {vr(PX,4)}, 0''')
    for f in range(4): a(f'v_mfma_f32_16x16x32_bf16 {vr(PV+4*f,4)}, {vr(VF+4*f,4)}, {vr(PX,4)}, 0')
    a(f'v_mfma_f32_16x16x16_bf16 {vr(SUM,4)}, {vr(ONES,2)}, {vr(PM,2)}, {vr(SUM,4)}')
    for f in range(4): a(f'v_mfma_f32_16x16x16_bf16 {vr(PV+4*f,4)}, {vr(VMR+2*(f>>1),2)}, {vr(PM+2*(f&1),2)}, {vr(PV+4*f,4)}')
    a(f'''v_cmp_eq_u32 vcc, 0, v42
s_lshl_b32 s63, s79, 11
v_add_u32 v41, s63, v41
v_rcp_f32 v{SUM}, v{SUM}''')
    for r in range(16): a(f'v_mul_f32 v{PV+r}, v{PV+r}, v{SUM}')
    for i in range(2):
        for q in range(4): a(f'v_cvt_pk_bf16_f32 v{S0+4*i+q}, v{PV+8*i+2*q}, v{PV+8*i+2*q+1}')
        a(f'ds_write_b128 v41, {vr(S0+4*i,4)} offset:{OXO+1024*i}')
    L = a.uniq('L_nx')
    a(f's_cbranch_vccnz {L}')
    xdma(a, 74, 75)
    a(f'''s_mov_b32 s{S_HAVE}, 1
{L}:
s_waitcnt lgkmcnt(0)
s_barrier''')
    OF = 80
    for i in range(8): a(f'ds_read_b128 {vr(OF+4*i,4)}, v{VLH} offset:{OXO+1024*i}')
    a(f'''s_lshr_b32 s76, s{S_SEG}, 1
s_and_b32 s76, s76, 1
s_mul_i32 s76, s76, {QSLOT}
s_add_u32 s76, s76, s{S_QP}
s_mul_i32 s77, s{S_HEAD}, 1152
s_add_u32 s77, s77, s76
s_lshl_b32 s63, s{S_WAVE}, 5
s_add_u32 s84, s77, s63
s_add_u32 s85, s84, {16*36864}
s_lshl_b32 s63, s{S_WAVE}, 8
s_add_u32 s77, s77, s63
s_add_u32 s78, s77, {16*36864}
s_waitcnt lgkmcnt(0)''')
    AC = 112
    groups = [(P, tau) for P in range(4) for tau in range(2)]
    def fin(i):
        P, tau = groups[i]; d = AC + 8 * i
        for q in range(4): a(f'v_cvt_pk_bf16_f32 v{d+q}, v{d+2*q}, v{d+2*q+1}')
        a(f'buffer_store_dwordx4 {vr(d,4)}, v{VPS}, {WS}, s{77+tau} offen offset:{64*P} {st}')
    for i, (P, tau) in enumerate(groups):
        for kp in range(4):
            for ph in range(2):
                d = AC + 8*i + 4*ph
                a(f'v_mfma_f32_16x16x32_bf16 {vr(d,4)}, {fr(wfrag(36+(P*2+ph)*4+kp))}, {vr(OF+16*tau+4*kp,4)}, {vr(d,4) if kp else 0}')
        if i: fin(i - 1)
    for kp in range(4):
        for tau in range(2):
            d = AC + 64 + 4*tau
            a(f'v_mfma_f32_16x16x32_bf16 {vr(d,4)}, {fr(wfrag(68+kp))}, {vr(OF+16*tau+4*kp,4)}, {vr(d,4) if kp else 0}')
    fin(7)
    for tau in range(2):
        d = AC + 64 + 4*tau
        a(f'v_cvt_pk_bf16_f32 v{d}, v{d}, v{d+1}\nv_cvt_pk_bf16_f32 v{d+1}, v{d+2}, v{d+3}')
        a(f'buffer_store_dwordx2 {vr(d,2)}, v{VPX}, {WS}, s{84+tau} offen offset:1024 {st}')
    a(f'''s_lshl_b32 s63, s{S_IDX}, 4
s_lshl_b32 s64, s{S_WAVE}, 2
s_add_u32 s63, s63, s64
s_add_u32 s63, s63, {QF}
s_lshr_b32 s77, s{S_IDX}, 5
s_lshl_b32 s77, s77, 9
s_add_u32 s77, s77, {QF}
v_lshlrev_b32 v40, 2, v{VL2}
s_waitcnt vmcnt(0)
s_mov_b64 exec, 1
buffer_store_dword v{ONES}, v{VZ}, {WS}, s63 offen {st}
s_mov_b64 exec, -1''')
    poll(a, f'buffer_load_dwordx2 v[44:45], v40, {WS}, s77 offen sc1', 'v_min_u32 v44, v44, v45\nv_cmp_eq_u32 vcc, 0, v44', sleep=0)
    a(f'''s_mul_i32 s77, s{S_HEAD}, 36864
s_add_u32 s76, s76, s77
s_mul_i32 s77, s{S_WAVE}, {8*1152}
s_add_u32 s77, s77, s76
s_lshl_b32 s63, s{S_WAVE}, 8
s_add_u32 s76, s76, s63''')
    RB = 80
    for i in range(8):
        a(f'buffer_load_dwordx4 {vr(RB+4*i,4)}, v{VR_}, {WS}, s76 offen sc1')
        if i < 7: a('s_add_u32 s76, s76, 4608')
    a(f'buffer_load_dwordx4 {vr(RB+32,4)}, v{VRX}, {WS}, s77 offen offset:1024 sc1')
    for i in range(8):
        a(f's_waitcnt vmcnt({8-i})\nv_mfma_f32_16x16x32_bf16 v[48:51], {vr(QSEL,4)}, {vr(RB+4*i,4)}, {"v[48:51]" if i else 0}')
    a(f's_waitcnt vmcnt(0)\nv_mfma_f32_16x16x32_bf16 v[52:55], {vr(QSEL,4)}, {vr(RB+32,4)}, 0')
    for r in range(4): a(f'v_add_f32_dpp v{52+r}, v{52+r}, v{52+r} row_ror:8 row_mask:0xf bank_mask:0xf')
    LN, NX = a.uniq('L_ln'), a.uniq('L_qn')
    a(f'''s_mov_b64 exec, 0xffffffff
ds_write_b128 v{VRW}, v[48:51]
ds_write_b128 v{VEW}, v[52:55]
s_mov_b64 exec, -1
s_waitcnt lgkmcnt(0)
s_barrier
s_cmp_lg_u32 s{S_WAVE}, 0
s_cbranch_scc1 {NX}
v_add_u32 v40, v{VL16}, v{VLH}
v_lshlrev_b32 v41, 1, v{VL2}
v_add_u32 v41, {HB}, v41
ds_read_b128 v[48:51], v40 offset:{ROWO}
ds_read_b128 v[52:55], v40 offset:{ROWO+16}''')
    for w in range(4): a(f'ds_read_b32 v{56+w}, v41 offset:{EXO+256*w}')
    F, Cc, Y, PK = 64, 80, 96, 112
    def unpack(dst, src):
        for p in range(4): a(f'v_lshlrev_b32 v{dst+2*p}, 16, v{src+p}\nv_and_b32 v{dst+2*p+1}, 0xffff0000, v{src+p}')
        a(f'v_lshlrev_b32 v{dst+8}, 16, v{src+4}')
    def pack(dst, src):
        for p in range(4): a(f'v_cvt_pk_bf16_f32 v{dst+p}, v{src+2*p}, v{src+2*p+1}')
        a(f'v_cvt_pk_bf16_f32 v{dst+4}, v{src+8}, v{src+8}')
    unpack(F, 208); unpack(Y, 216)
    a(f's_mul_i32 s76, s{S_ROW}, 1152\ns_waitcnt lgkmcnt(0)\nv_add_f32 v56, v56, v57\nv_add_f32 v58, v58, v59\nv_add_f32 v56, v56, v58')
    pack(PK, 48); unpack(Cc, PK)
    for e in range(9): a(f'v_add_f32 v{F+e}, v{F+e}, v{Cc+e}')
    pack(PK, F)
    a(f'''s_cmp_eq_u32 s{S_LAYER}, 0
s_cbranch_scc1 {LN}
buffer_store_dwordx4 {vr(PK,4)}, v{VL16}, s[{R2}:{R2+3}], s76 offen
buffer_store_short v{PK+4}, v{VL2}, s[{R2}:{R2+3}], s76 offen offset:1024
s_branch {NX}
{LN}:''')
    def stats():
        a(f'v_add_f32 v44, v{F}, v{F+1}\nv_add_f32 v45, v{F+2}, v{F+3}')
        for e in range(4, 9): a(f'v_add_f32 v{44+e%2}, v{44+e%2}, v{F+e}')
        a('v_add_f32 v44, v44, v45'); red64(a, 44, 45)
        a(f'v_mul_f32 v46, {-1.0/576:.10e}, v44')
        for e in range(9): a(f'v_add_f32 v{Cc+e}, v{F+e}, v46')
        a(f'v_mul_f32 v44, v{Cc}, v{Cc}\nv_mul_f32 v45, v{Cc+1}, v{Cc+1}')
        for e in range(2, 9): a(f'v_fmac_f32 v{44+e%2}, v{Cc+e}, v{Cc+e}')
        a('v_add_f32 v44, v44, v45'); red64(a, 44, 45)
        a(f'v_mul_f32 v47, {1.0/576:.10e}, v44')
    unpack(F, PK)
    stats()
    a('v_add_f32 v47, 0x3727c5ac, v47\nv_rsq_f32 v47, v47')
    for e in range(9): a(f'v_mul_f32 v{Cc+e}, v{Cc+e}, v47\nv_fmac_f32 v{F+e}, v{Cc+e}, v{Y+e}')
    pack(PK, F)
    a(f'''s_add_u32 s77, s76, {X1+LSTR}
s_add_u32 s78, s76, {H1+LSTR}
v_add_u32 v41, {HB}, v{VL2}
buffer_store_dwordx4 {vr(PK,4)}, v{VL16}, {WS}, s77 offen sc1
ds_write_b16 v41, v{PK+4} offset:{BNO}''')
    unpack(F, PK)
    stats()
    rbf(a, 46); rbf(a, 47); a('v_add_f32 v47, 0x3727c5ac, v47'); rbf(a, 47); a('v_sqrt_f32 v47, v47'); rbf(a, 47); a('v_rcp_f32 v47, v47')
    for e in range(9): a(f'v_add_f32 v{Cc+e}, v{F+e}, v46')
    P2 = 120
    pack(P2, Cc); unpack(Cc, P2)
    for e in range(9): a(f'v_mul_f32 v{Cc+e}, v{Cc+e}, v47')
    pack(P2, Cc)
    a(f'''ds_write_b16 v41, v{P2+4} offset:{BNO+128}
buffer_store_dwordx4 {vr(P2,4)}, v{VL16}, {WS}, s78 offen sc1
s_waitcnt lgkmcnt(0)
ds_read_b128 v[48:51], v{VLH} offset:{BNO}
ds_read_b128 v[52:55], v{VLH} offset:{BNO+128}
s_lshl_b32 s63, s{S_ROW}, 2
s_add_u32 s63, s63, {HF + 8192}
s_waitcnt lgkmcnt(0)
s_mov_b64 exec, 0xff
buffer_store_dwordx4 v[48:51], v{VL16}, {WS}, s77 offen offset:1024 sc1
buffer_store_dwordx4 v[52:55], v{VL16}, {WS}, s78 offen offset:1024 sc1
s_waitcnt vmcnt(0)
s_mov_b64 exec, 1
buffer_store_dword v{ONES}, v{VZ}, {WS}, s63 offen sc1
s_mov_b64 exec, -1
{NX}:
s_cmp_ge_u32 s{S_SEG}, 62
s_cbranch_scc1 L_qo_done{tag}
s_mov_b32 s{S_SEG}, s74
s_mov_b32 s{S_BUF}, s75
s_cmp_eq_u32 s{S_HAVE}, 1
s_cbranch_scc1 L_qo_loop{tag}''')
    hf_poll(a, S_SEG, 40)
    xdma(a, S_SEG, S_BUF)
    a(f's_waitcnt vmcnt(0)\ns_branch L_qo_loop{tag}\nL_qo_done{tag}:')
    stamp(a, 6, 40)
    a('s_endpgm')
```

```python
import sys, os
sys.path.insert(0, os.path.dirname(__file__))
from common import *
import prologue, workers, chain

def build(enable=('conv', 'stageb', 'kv', 'chain', 'qo'), maxrole=8, opts=None):
    opts = opts or {}
    a = Asm()
    entry(a)
    stamp(a, 0, 20)
    chain.poison_init(a)
    a(f'''s_cmp_lt_u32 s{S_ROLE}, 3
s_cbranch_scc1 L_main
s_sub_u32 s66, s{S_ROLE}, 3
s_mul_i32 s66, s66, 29
s_add_u32 s66, s66, s{S_HEAD}
s_cmp_ge_u32 s{S_HEAD}, 29
s_cbranch_scc1 L_noconv
s_cmp_ge_u32 s66, 144
s_cbranch_scc1 L_noconv''')
    pre = opts.get('pre')
    if pre: pre(a)
    prologue.conv(a)
    stamp(a, 1, 20)
    a('s_branch L_postconv\nL_noconv:')
    if pre: pre(a)
    register(a, 0, 12)
    census(a, 12)
    a(f'''L_postconv:
s_cmp_lt_u32 s{S_ROLE}, 6
s_cbranch_scc1 L_main
s_sub_u32 s66, s{S_ROLE}, 6
s_lshl_b32 s66, s66, 5
s_add_u32 s66, s66, s{S_HEAD}''')
    prologue.stageb(a)
    stamp(a, 2, 20)
    a('L_main:')
    on = opts.get('roles', range(8))
    for r, lab in ((0, 'L_chain'), (1, 'L_kv'), (2, 'L_qo'), (3, 'L_qo'), (4, 'L_chain'), (5, 'L_kv'), (6, 'L_qo'), (7, 'L_qo')):
        if r in on: a(f's_cmp_eq_u32 s{S_ROLE}, {r}\ns_cbranch_scc1 {lab}')
    L = a.uniq()
    a(f's_cmp_ge_u32 s{S_ROLE}, 3\ns_cbranch_scc1 {L}')
    register(a, 0, 12); census(a, 12)
    a(f'{L}:\ns_endpgm')
    if set(on) & {1, 5}: a('L_kv:'); workers.kv_role(a)
    if set(on) & {2, 3, 6, 7}: a('L_qo:'); workers.qo_role(a)
    if set(on) & {0, 4}: a('L_chain:'); chain.chain_role(a)
    renumber(a)
    body = a.finalize()
    hdr = open('interleave_layers__ssm_conv_h3__memory_aug_recurrent_mem_tr__prompt.s.ref').read().split('; Override launch')[0]
    s = hdr + f'''; @launch grid=(256,1,1) block=(256,1,1) lds=163840
.amdgcn_target "amdgcn-amd-amdhsa--gfx950"
.text
.globl {KNAME}
.p2align 8
.type {KNAME},@function
{KNAME}:
{body}.section .rodata,"a"
.p2align 6
.amdhsa_kernel {KNAME}
  .amdhsa_next_free_vgpr 512
  .amdhsa_next_free_sgpr 102
  .amdhsa_accum_offset 256
  .amdhsa_group_segment_fixed_size 0
  .amdhsa_kernarg_size 128
  .amdhsa_user_sgpr_count 2
  .amdhsa_user_sgpr_kernarg_segment_ptr 1
  .amdhsa_system_sgpr_workgroup_id_x 1
.end_amdhsa_kernel
'''
    return s, a
if __name__ == '__main__':
    roles = eval(sys.argv[1]) if len(sys.argv) > 1 else range(8)
    OPT['prof'] = 'prof' in sys.argv[2:]; OPT['cprof'] = 'cprof' in sys.argv[2:]
    s, a = build(opts=dict(roles=roles))
    open('k.s', 'w').write(s)
    print('instructions', len(a.L), 'nops added', a.nops_added)
```
